```python
import torch

def _softmax(x, axis=-1):
    return torch.softmax(x, dim=axis)
def _gelu(x):
    return torch.nn.functional.gelu(x, approximate="tanh")
def _silu(x):
    return torch.nn.functional.silu(x)
def _sigmoid(x):
    return torch.sigmoid(x)
def _layernorm(x, axis=-1, eps=1e-5):
    m = x.mean(dim=axis, keepdim=True)
    v = x.var(dim=axis, keepdim=True, unbiased=False)
    return (x - m) / torch.sqrt(v + eps)
def _scatter_add(tgt, idx, src, axis=0):
    return tgt.clone().index_add_(axis, idx, src)
def _segment_sum(src, seg, n):
    out = torch.zeros((n,) + src.shape[1:], dtype=src.dtype)
    return out.index_add_(0, seg, src)
def _pad(x, pw):
    flat = tuple(v for pair in reversed(pw) for v in pair)
    return torch.nn.functional.pad(x, flat)

kernel_name = 'concat_heads__spectral_fnet__sliding_local_dilated__prompt'

def setup_inputs():

    _w = (lambda a: (lambda t: t.to(torch.bfloat16) if t.is_floating_point() else t)(torch.as_tensor(a)))
    def _A_setup():
        B, S, D = 1, 2048, 512
        ns = torch.arange(S)[:, None] * torch.arange(S)[None, :]
        nd = torch.arange(D)[:, None] * torch.arange(D)[None, :]
        Ws_re = torch.cos(-2.0 * torch.pi * ns / S).to(float)
        Ws_im = torch.sin(-2.0 * torch.pi * ns / S).to(float)
        Wd_re = torch.cos(-2.0 * torch.pi * nd / D).to(float)
        Wd_im = torch.sin(-2.0 * torch.pi * nd / D).to(float)
        return {
            "x": _w((lambda *s: torch.randn(*s, dtype=torch.bfloat16) * 0.05)(B, S, D)),
            "dft_seq_re": _w(Ws_re),
            "dft_seq_im": _w(Ws_im),
            "dft_hid_re": _w(Wd_re),
            "dft_hid_im": _w(Wd_im),
        }
    _A_in = _A_setup()

    def _B_setup():
        B, S, D = 1, 2048, 512
        return {
            "x": _w((lambda *s: torch.randn(*s, dtype=torch.bfloat16) * 0.2)(B, S, D)),
            "wqkv": _w((lambda *s: torch.randn(*s, dtype=torch.bfloat16) * 0.8)(D, 3 * D)),
            "wo": _w((lambda *s: torch.randn(*s, dtype=torch.bfloat16) * 0.2)(D, D)),
        }
    _B_in = _B_setup()

    return {
        "A_x": _A_in["x"],
        "A_dft_seq_re": _A_in["dft_seq_re"],
        "A_dft_seq_im": _A_in["dft_seq_im"],
        "A_dft_hid_re": _A_in["dft_hid_re"],
        "A_dft_hid_im": _A_in["dft_hid_im"],
        "B_x": _B_in["x"],
        "B_wqkv": _B_in["wqkv"],
        "B_wo": _B_in["wo"],
    }

def reference(A_x, A_dft_seq_re, A_dft_seq_im, A_dft_hid_re, A_dft_hid_im, B_x, B_wqkv, B_wo):
    def _A_ref(x, dft_seq_re, dft_seq_im, dft_hid_re, dft_hid_im):
        a = torch.einsum("bsd,ed->bse", x, dft_hid_re)
        b = torch.einsum("bsd,ed->bse", x, dft_hid_im)
        y = torch.einsum("ts,bse->bte", dft_seq_re, a) - torch.einsum("ts,bse->bte", dft_seq_im, b)
        return y

    def _B_ref(x, wqkv, wo):
        B, S, D = x.shape
        H = 32; Dh = D // H
        W, dil = 8, 2
        qkv = (lambda x, *d: x.permute(*d))((x @ wqkv).reshape(B, S, 3, H, Dh), 2, 0, 3, 1, 4)
        q, k, v = qkv[0], qkv[1], qkv[2]
        scale = Dh ** -0.5
        pos = torch.arange(S)
        off = torch.arange(W) * dil
        idx = pos[:, None] - off[None, :]
        mask = idx >= 0
        idx_c = torch.where(mask, idx, 0).reshape(-1)
        kg = k[:, :, idx_c, :].reshape(B, H, S, W, Dh)
        vg = v[:, :, idx_c, :].reshape(B, H, S, W, Dh)
        logits = torch.einsum("bhsd,bhswd->bhsw", q, kg) * scale
        logits = torch.where(mask[None, None, :, :], logits, -1e9)
        attn = _softmax(logits, axis=-1)
        o = torch.einsum("bhsw,bhswd->bhsd", attn, vg)
        return (lambda x, *d: x.permute(*d))(o, 0, 2, 1, 3).reshape(B, S, D) @ wo

    a = _A_ref(A_x, A_dft_seq_re, A_dft_seq_im, A_dft_hid_re, A_dft_hid_im)
    b = _B_ref(B_x, B_wqkv, B_wo)
    return torch.concatenate([a, b], axis=-1)
```

```python
import re

TRANS = ("v_exp_f32", "v_log_f32", "v_rcp_f32", "v_rsq_f32", "v_sqrt_f32", "v_sin_f32", "v_cos_f32")


def _regs(tok):
    tok = tok.strip()
    tok = tok.lstrip("-")
    m = re.fullmatch(r"abs\((.*)\)", tok)
    if m:
        tok = m.group(1)
    m = re.fullmatch(r"\|(.*)\|", tok)
    if m:
        tok = m.group(1)
    m = re.fullmatch(r"([vsa])(\d+)", tok)
    if m:
        return {tok}
    m = re.fullmatch(r"([vsa])\[(\d+):(\d+)\]", tok)
    if m:
        return {f"{m.group(1)}{i}" for i in range(int(m.group(2)), int(m.group(3)) + 1)}
    if tok in ("vcc", "vcc_lo", "vcc_hi"):
        return {"vcc"}
    if tok in ("exec", "exec_lo", "exec_hi"):
        return {"exec"}
    if tok == "m0":
        return {"m0"}
    return set()


class Ins:
    def __init__(self, text):
        self.text = text
        t = text.split(";")[0].strip()
        self.is_label = t.endswith(":")
        self.op = ""
        self.dst = set()
        self.src = set()
        self.kind = "other"
        self.srcc = set()
        self.passes = 0
        self.nop = 0
        if not t or self.is_label or t.startswith("."):
            self.kind = "pseudo"
            return
        parts = t.split(None, 1)
        op = parts[0]
        self.op = op
        ops = []
        if len(parts) > 1:
            ops = [o.strip() for o in re.split(r",(?![^\[]*\])", parts[1])]
            last = ops[-1].split()
            mods = last[1:]
            ops[-1] = last[0] if last else ""
        else:
            mods = []
        self.mods = mods
        R = [_regs(o) for o in ops]
        allr = set().union(*R) if R else set()
        if op == "s_nop":
            self.kind = "nop"
            self.nop = int(ops[0], 0) + 1
        elif op.startswith("v_mfma"):
            self.kind = "mfma"
            self.dst = R[0]
            self.src = R[1] | R[2] | R[3]
            self.srcab = R[1] | R[2]
            self.srcc = R[3]
            self.passes = 8 if "32x32" in op else 4
        elif op.startswith("v_"):
            self.kind = "trans" if op.split("_e")[0] in TRANS or op in TRANS else "valu"
            if op.startswith("v_cmp"):
                self.dst = R[0]
                self.src = set().union(*R[1:])
            elif op.startswith("v_permlane") and "swap" in op:
                self.dst = R[0] | R[1]
                self.src = R[0] | R[1]
            elif op.startswith(("v_fmac", "v_mac", "v_pk_fmac", "v_dot2c")):
                self.dst = R[0]
                self.src = allr
            elif op.startswith(("v_add_co", "v_sub_co", "v_addc_co", "v_subb_co")):
                self.dst = R[0] | R[1]
                self.src = set().union(*R[2:])
            else:
                self.dst = R[0]
                self.src = set().union(*R[1:]) if len(R) > 1 else set()
                if op.startswith("v_cndmask") and len(R) == 3:
                    self.src |= {"vcc"}
        elif op.startswith(("buffer_", "global_")):
            self.kind = "vmem"
            self.lds = "lds" in mods
            if "store" in op or ("atomic" in op and "sc0" not in mods):
                self.src = allr
                self.store_data = R[0] if op.startswith("buffer_") else R[1]
                self.wide = op.endswith(("x3", "x4"))
            elif self.lds:
                self.src = allr | {"m0"}
            else:
                self.dst = R[0]
                self.src = set().union(*R[1:])
        elif op.startswith("ds_"):
            self.kind = "ds"
            if "write" in op:
                self.src = allr
            else:
                self.dst = R[0]
                self.src = set().union(*R[1:])
        elif op.startswith("s_"):
            self.kind = "salu"
            if op.startswith(("s_cmp", "s_cbranch", "s_branch", "s_waitcnt", "s_barrier", "s_endpgm", "s_setprio", "s_sleep")):
                self.src = allr
            else:
                self.dst = R[0] if R else set()
                self.src = set().union(*R[1:]) if len(R) > 1 else set()


def need(p, c):
    n = 0
    pv = {r for r in p.dst if r[0] in "va" and r != "vcc"}
    ps = {r for r in p.dst if r[0] == "s" or r == "vcc"}
    if p.kind in ("valu", "trans"):
        if c.kind == "mfma" and pv & c.src:
            n = max(n, 2)
        if p.kind == "trans" and c.kind in ("valu", "vmem", "ds") and pv & c.src:
            n = max(n, 1)
        if c.kind in ("valu", "trans"):
            if ps & c.src:
                n = max(n, 4 if c.op.startswith(("v_readlane", "v_writelane")) else 2)
            if c.op.startswith(("v_readfirstlane", "v_readlane")) and pv & c.src:
                n = max(n, 1)
            if (c.op.startswith("v_permlane") or "dpp" in c.op or any(m.startswith(("row_", "quad_perm")) for m in c.mods)) and pv & c.src:
                n = max(n, 2)
        if c.kind == "vmem" and ps & c.src:
            n = max(n, 5)
        if c.kind == "salu" and ps & c.src:
            n = max(n, 1)
        if "exec" in p.dst and c.kind == "mfma":
            n = max(n, 4)
    if p.kind == "mfma":
        big = 12 if p.passes == 8 else 8
        if c.kind in ("valu", "trans", "vmem", "ds") and (pv & (c.src | c.dst)):
            n = max(n, big)
        if c.kind == "mfma":
            if pv & c.srcab:
                n = max(n, big)
            elif pv & c.srcc:
                if not (c.srcc == p.dst and c.passes == p.passes):
                    n = max(n, big - 2)
            elif pv & c.dst:
                n = max(n, big - 2)
        if c.kind in ("valu", "trans") and (p.srcc & c.dst):
            n = max(n, 7 if p.passes == 8 else 3)
    if p.kind == "salu" and "m0" in p.dst and c.kind == "vmem" and getattr(c, "lds", False):
        n = max(n, 1)
    if p.kind == "salu" and "m0" in p.dst and c.op.startswith("v_movrel"):
        n = max(n, 1)
    if p.kind == "vmem" and getattr(p, "wide", False) and (p.store_data & c.dst):
        n = max(n, 2)
    return n


class Asm:
    def __init__(self):
        self.ins = []

    def __call__(self, text):
        for line in text.strip("\n").split("\n"):
            line = line.strip()
            if line:
                self.ins.append(Ins(line))

    def label(self, name):
        self.ins.append(Ins(name + ":"))

    def pad(self):
        out = []
        labels = {}

        def dist_pad(hist, c):
            d = 0
            req = 0
            for p in reversed(hist[-24:]):
                if p.kind == "pseudo":
                    continue
                n = need(p, c)
                if n - d > req:
                    req = n - d
                d += p.nop if p.kind == "nop" else 1
                if d > 14:
                    break
            return req

        fwd = {}
        alts = []
        for c in self.ins:
            if c.kind == "pseudo":
                if c.is_label:
                    nm = c.text.strip()[:-1]
                    labels[nm] = len(out)
                    for h in fwd.get(nm, []):
                        alts.append([h, 0])
                out.append(c)
                continue
            r = dist_pad(out, c)
            for a in alts:
                r = max(r, dist_pad(a[0], c))
            while r > 0:
                k = min(r, 16)
                nop = Ins(f"s_nop {k-1}")
                out.append(nop)
                for a in alts:
                    a[0].append(nop)
                r -= k
            out.append(c)
            for a in alts:
                a[0].append(c)
                a[1] += 1
            alts = [a for a in alts if a[1] < 16]
            if c.op.startswith(("s_cbranch", "s_branch")):
                tgt = c.text.split()[1]
                if tgt in labels:
                    head = [x for x in out[labels[tgt]:] if x.kind != "pseudo"][:16]
                    worst = 0
                    hist = list(out)
                    for i, h in enumerate(head):
                        rr = dist_pad(hist, h)
                        worst = max(worst, rr)
                        hist.append(h)
                    if worst > 0:
                        br = out.pop()
                        out.append(Ins(f"s_nop {worst-1}"))
                        out.append(br)
                else:
                    fwd.setdefault(tgt, []).append([x for x in out[-24:]])
        self.ins = out

    def text(self):
        lines = []
        for i in self.ins:
            if i.kind == "pseudo":
                lines.append(i.text)
            else:
                lines.append("  " + i.text)
        return "\n".join(lines) + "\n"
```

```python
import struct, sys, math
sys.path.insert(0, "gen")
from asmlib import Asm

NAME = "concat_heads__spectral_fnet__sliding_local_dilated__prompt"


def f32(x):
    return "0x%08x" % struct.unpack("<I", struct.pack("<f", x))[0]


class VA:
    def __init__(self, start=0):
        self.n = start

    def __call__(self, cnt=1, align=None):
        al = align or (2 if cnt >= 2 else 1)
        if cnt >= 4 and align is None:
            al = 4
        self.n = (self.n + al - 1) // al * al
        r = self.n
        self.n += cnt
        return r


def vr(b, n=1):
    return f"v{b}" if n == 1 else f"v[{b}:{b+n-1}]"


OOFF = 0
ZOFF = 2 << 20
WS_BYTES = 6 << 20

XB = 65536
A1B = 65536 + 81920


def k1():
    a = Asm()
    V = VA(0)
    vL = V(); vN = V(); vG = V(); vT0 = V(); vT1 = V(); vT2 = V(); vT3 = V()
    vAoff = V(); vXoff = V(); vWoff = V(); vWvoff = V(); vWcur = V()
    vXl = V(4); vXa = V(4); vWq = V(); vWk = V()
    Hc = V(4); Hs = V(4); tc = V(4); ts = V(4); Fre = V(4); Fim = V(4)
    ZR = V(16)
    accq = V(16); acck = V(20); accv = V(20)
    mcur = V(2); mprev = V(2)
    Preg = V(16)
    tmp = V(96)
    xf = [tmp, tmp + 20]; wf = [tmp + 40, tmp + 48]
    nv = V.n
    sW, sRB, sHQ, sROT, sS2, sH = 24, 25, 26, 27, 28, 29
    sM, sIT, sHQ128, sWm0 = 40, 41, 42, 43

    a(f"""
    s_cmp_ge_u32 s2, 256
    s_cbranch_scc1 K1_END
    s_load_dwordx2 s[8:9], s[0:1], 0
    s_load_dwordx2 s[12:13], s[0:1], 40
    s_load_dwordx2 s[16:17], s[0:1], 48
    s_load_dwordx2 s[20:21], s[0:1], 80
    v_lshrrev_b32 v{vT0}, 6, v0
    v_and_b32 v{vL}, 63, v0
    v_readfirstlane_b32 s{sW}, v{vT0}
    s_mov_b32 s10, 0x200000
    s_mov_b32 s11, 0x20000
    s_mov_b32 s14, 0x200000
    s_mov_b32 s15, 0x20000
    s_mov_b32 s18, 0x180000
    s_mov_b32 s19, 0x20000
    s_mov_b32 s22, {WS_BYTES}
    s_mov_b32 s23, 0x20000
    s_and_b32 s30, s2, 7
    s_lshr_b32 s31, s2, 3
    s_lshr_b32 s32, s30, 1
    s_lshl_b32 s32, s32, 3
    s_lshr_b32 s33, s31, 2
    s_add_u32 s{sRB}, s32, s33
    s_and_b32 s32, s30, 1
    s_lshl_b32 s32, s32, 2
    s_and_b32 s33, s31, 3
    s_add_u32 s{sHQ}, s32, s33
    s_and_b32 s{sROT}, s{sRB}, 3
    s_lshl_b32 s32, s30, 5
    s_add_u32 s32, s32, s31
    s_lshr_b32 s{sS2}, s32, 1
    s_and_b32 s{sH}, s32, 1
    s_lshl_b32 s{sHQ128}, s{sHQ}, 7
    s_lshl_b32 s{sWm0}, s{sW}, 10
    v_and_b32 v{vN}, 15, v{vL}
    v_lshrrev_b32 v{vG}, 4, v{vL}
    v_lshlrev_b32 v{vAoff}, 4, v{vL}
    s_lshl_b32 s32, s{sW}, 9
    s_add_u32 s32, s32, s{sS2}
    s_lshl_b32 s32, s32, 10
    s_lshl_b32 s33, s{sW}, 12
    s_add_u32 s33, s33, {A1B}
    s_mov_b32 m0, s33
    s_waitcnt lgkmcnt(0)
    """)
    for i in range(4):
        a(f"buffer_load_dwordx4 v{vAoff}, s[8:11], s32 offen lds")
        if i < 3:
            a(f"s_add_u32 m0, m0, 1024")
            a(f"s_add_u32 s32, s32, 131072")
    a(f"""
    s_lshl_b32 s34, s{sW}, 2
    v_add_u32 v{vT0}, s34, v{vG}
    v_xor_b32 v{vT1}, v{vN}, v{vT0}
    v_lshlrev_b32 v{vT1}, 4, v{vT1}
    v_lshl_add_u32 v{vXoff}, v{vT0}, 10, v{vT1}
    s_lshl_b32 s35, s{sRB}, 16
    s_sub_u32 s35, s35, 16384
    s_max_i32 s36, s35, 0
    s_add_u32 s37, s{sWm0}, {XB}
    """)
    for i in range(5):
        for kc in range(4):
            a(f"s_add_u32 m0, s37, {kc*20480 + i*4096}")
            if i == 0:
                a(f"s_add_u32 s38, s36, {kc*256}")
            else:
                a(f"s_add_u32 s38, s35, {i*16384 + kc*256}")
            a(f"buffer_load_dwordx4 v{vXoff}, s[12:15], s38 offen lds")
    a(f"""
    s_lshr_b32 s34, s{sW}, 1
    s_lshl_b32 s34, s34, 3
    v_lshl_add_u32 v{vT1}, v{vG}, 1, s34
    v_xor_b32 v{vT1}, v{vN}, v{vT1}
    v_mul_u32_u24 v{vT0}, 3072, v{vT0}
    v_and_b32 v{vT2}, 7, v{vT1}
    v_lshl_add_u32 v{vT0}, v{vT2}, 4, v{vT0}
    v_lshrrev_b32 v{vT1}, 3, v{vT1}
    v_lshl_add_u32 v{vWoff}, v{vT1}, 10, v{vT0}
    v_mul_u32_u24 v{vT1}, 196608, v{vT1}
    v_add_u32 v{vWvoff}, v{vT1}, v{vT0}
    s_mov_b32 s{sM}, 0
    s_call_b64 s[54:55], K1_ISSUE
    s_call_b64 s[54:55], K1_ISSUE
    s_call_b64 s[54:55], K1_ISSUE
    s_call_b64 s[54:55], K1_ISSUE
    """)
    ang = tmp; cs = tmp + 8; sn = tmp + 16
    e1f = vT0; g4f = vT1; nf = vT2
    a(f"""
    s_lshl_b32 s34, s{sH}, 4
    v_add_u32 v{e1f}, s34, v{vN}
    v_cvt_f32_u32 v{e1f}, v{e1f}
    v_lshlrev_b32 v{g4f}, 2, v{vG}
    v_cvt_f32_u32 v{g4f}, v{g4f}
    v_cvt_f32_u32 v{nf}, v{vN}
    v_mul_f32 v{e1f}, {f32(1/32)}, v{e1f}
    v_mul_f32 v{vT3}, v{g4f}, v{e1f}
    """)
    for j, jp in enumerate([0, 1, 2, 3, 16, 17, 18, 19]):
        if jp == 0:
            a(f"v_mov_b32 v{ang+j}, v{vT3}")
        else:
            a(f"v_fmamk_f32 v{ang+j}, v{e1f}, {f32(float(jp))}, v{vT3}")
    for j in range(8):
        a(f"v_cos_f32 v{cs+j}, v{ang+j}")
        a(f"v_sin_f32 v{sn+j}, v{ang+j}")
    for j in range(4):
        a(f"v_cvt_pk_bf16_f32 v{Hc+j}, v{cs+2*j}, v{cs+2*j+1}")
        a(f"v_cvt_pk_bf16_f32 v{Hs+j}, -v{sn+2*j}, -v{sn+2*j+1}")
    for r in range(4):
        a(f"v_mul_f32 v{ang+r}, {f32(1/16)}, v{ang+r}")
    for r in range(4):
        a(f"v_cos_f32 v{tc+r}, v{ang+r}")
        a(f"v_sin_f32 v{ts+r}, v{ang+r}")
    a(f"v_mul_f32 v{nf}, {f32(1/16)}, v{nf}")
    a(f"v_mul_f32 v{ang}, v{g4f}, v{nf}")
    for jj in range(1, 4):
        a(f"v_fmamk_f32 v{ang+jj}, v{nf}, {f32(float(jj))}, v{ang}")
    for jj in range(4):
        a(f"v_cos_f32 v{cs+jj}, v{ang+jj}")
        a(f"v_sin_f32 v{sn+jj}, v{ang+jj}")
    for jj in range(4):
        a(f"v_cvt_pk_bf16_f32 v{Fre+jj}, v{cs+jj}, v{sn+jj}")
        a(f"v_cvt_pk_bf16_f32 v{Fim+jj}, -v{sn+jj}, v{cs+jj}")
    a(f"""
    v_xor_b32 v{vT0}, v{vN}, v{vG}
    v_lshlrev_b32 v{vT0}, 4, v{vT0}
    v_lshl_add_u32 v{vXl}, v{vN}, 8, v{vT0}
    v_xor_b32 v{vXl+1}, 64, v{vXl}
    v_xor_b32 v{vXl+2}, 128, v{vXl}
    v_xor_b32 v{vXl+3}, 192, v{vXl}
    """)
    a(f"""
    v_bfe_u32 v{vT0}, v{vL}, 2, 2
    v_and_b32 v{vT1}, 3, v{vL}
    v_lshl_add_u32 v{vT2}, v{vG}, 3, v{vT0}
    v_lshlrev_b32 v{vT2}, 8, v{vT2}
    v_lshrrev_b32 v{vT3}, 1, v{vT1}
    s_lshl_b32 s34, s{sW}, 1
    v_add_u32 v{vT3}, s34, v{vT3}
    v_lshlrev_b32 v{vT0}, 1, v{vT0}
    v_xor_b32 v{vT3}, v{vT3}, v{vT0}
    v_and_b32 v{vT0}, 1, v{vG}
    v_lshlrev_b32 v{vT0}, 3, v{vT0}
    v_xor_b32 v{vT3}, v{vT3}, v{vT0}
    v_lshl_add_u32 v{vT2}, v{vT3}, 4, v{vT2}
    v_and_b32 v{vT1}, 1, v{vT1}
    v_lshl_add_u32 v{vWq}, v{vT1}, 3, v{vT2}
    v_xor_b32 v{vWk}, 128, v{vWq}
    """)
    a(f"v_lshlrev_b32 v{vT0}, 2, v{vG}")
    for r in range(4):
        a(f"v_add_u32 v{vT1}, {r}, v{vT0}")
        a(f"v_cmp_le_u32 s[{44+2*r}:{45+2*r}], v{vT1}, v{vN}")
    a(f"""
    v_and_b32 v{vT1}, 1, v{vN}
    v_cmp_eq_u32 s[52:53], 1, v{vT1}
    v_mov_b32 v{vT2}, 0xffff
    v_mov_b32 v{vT3}, 0xffff0000
    v_cndmask_b32 v{vT2}, v{vT2}, v{vT3}, s[52:53]
    v_add_u32 v{vT0}, v{vT0}, v{vT1}
    v_cmp_le_u32 vcc, v{vT0}, v{vN}
    v_cndmask_b32 v{mcur}, 0, v{vT2}, vcc
    v_cndmask_b32 v{mprev}, v{vT2}, 0, vcc
    v_add_u32 v{vT0}, 2, v{vT0}
    v_cmp_le_u32 vcc, v{vT0}, v{vN}
    v_cndmask_b32 v{mcur+1}, 0, v{vT2}, vcc
    v_cndmask_b32 v{mprev+1}, v{vT2}, 0, vcc
    """)
    for i in range(56):
        a(f"v_mov_b32 v{accq+i}, 0")
    XA = tmp; Dre = tmp + 16; Dim = tmp + 32; PA = tmp + 48; Gre = tmp + 64; Gim = tmp + 80
    vRd = vT0; vEx = vT1
    a(f"""
    s_lshl_b32 s34, s{sW}, 12
    s_add_u32 s34, s34, {A1B}
    v_lshl_add_u32 v{vRd}, v{vL}, 3, s34
    s_waitcnt vmcnt(36)
    """)
    for i in range(4):
        a(f"ds_read_b64_tr_b16 {vr(XA+4*i,2)}, v{vRd} offset:{i*1024}")
        a(f"ds_read_b64_tr_b16 {vr(XA+4*i+2,2)}, v{vRd} offset:{i*1024+512}")
    exw = [Gim + 16 - 4 + r for r in range(4)]
    exw = [V() for _ in range(4)]
    nv = V.n
    for r in range(4):
        a(f"v_lshl_add_u32 v{vT2}, v{vG}, 2, {r}")
        a(f"v_xor_b32 v{vT3}, v{vN}, v{vT2}")
        a(f"v_lshlrev_b32 v{vT3}, 4, v{vT3}")
        a(f"v_lshl_add_u32 v{vT3}, v{vT2}, 8, v{vT3}")
        a(f"v_add_u32 v{exw[r]}, s34, v{vT3}")
    a("s_waitcnt lgkmcnt(0)")
    for i in range(4):
        a(f"v_mfma_f32_16x16x32_bf16 {vr(Dre+4*i,4)}, {vr(XA+4*i,4)}, {vr(Hc,4)}, 0")
        a(f"v_mfma_f32_16x16x32_bf16 {vr(Dim+4*i,4)}, {vr(XA+4*i,4)}, {vr(Hs,4)}, 0")
    for i in range(4):
        for r in range(4):
            x = XA + 4 * i + r
            a(f"v_mul_f32 v{x}, v{Dre+4*i+r}, v{tc+r}")
            a(f"v_fmac_f32 v{x}, v{Dim+4*i+r}, v{ts+r}")
            a(f"v_mul_f32 v{Dim+4*i+r}, v{Dim+4*i+r}, v{tc+r}")
            a(f"v_fma_f32 v{Dim+4*i+r}, -v{Dre+4*i+r}, v{ts+r}, v{Dim+4*i+r}")
        for r in range(4):
            a(f"v_cvt_pk_bf16_f32 v{PA+4*i+r}, v{XA+4*i+r}, v{Dim+4*i+r}")
        a(f"v_mfma_f32_16x16x32_bf16 {vr(Gre+4*i,4)}, {vr(PA+4*i,4)}, {vr(Fre,4)}, 0")
        a(f"v_mfma_f32_16x16x32_bf16 {vr(Gim+4*i,4)}, {vr(PA+4*i,4)}, {vr(Fim,4)}, 0")
    for i in range(4):
        for r in range(4):
            a(f"v_cvt_pk_bf16_f32 v{Dre+4*i+r}, v{Gre+4*i+r}, v{Gim+4*i+r}")
            a(f"ds_write_b32 v{exw[r]}, v{Dre+4*i+r} offset:{i*4}")
    a(f"""
    s_lshl_b32 s34, s{sW}, 2
    v_xor_b32 v{vT2}, s34, v{vN}
    v_lshlrev_b32 v{vT2}, 4, v{vT2}
    v_lshl_add_u32 v{vT2}, v{vN}, 8, v{vT2}
    v_lshl_add_u32 v{vT2}, v{vG}, 12, v{vT2}
    v_add_u32 v{vT2}, {A1B}, v{vT2}
    s_waitcnt lgkmcnt(0)
    s_barrier
    """)
    for u in range(4):
        if u == 0:
            a(f"ds_read_b128 {vr(XA,4)}, v{vT2}")
        else:
            a(f"v_xor_b32 v{vT3}, {u*16}, v{vT2}")
            a(f"ds_read_b128 {vr(XA+4*u,4)}, v{vT3}")
    for u in range(4):
        a(f"s_waitcnt lgkmcnt({3-u})")
        a(f"v_mfma_f32_16x16x32_bf16 {vr(Gre+4*u,4)}, {vr(XA+4*u,4)}, {vr(Fre,4)}, 0")
        a(f"v_mfma_f32_16x16x32_bf16 {vr(Gim+4*u,4)}, {vr(XA+4*u,4)}, {vr(Fim,4)}, 0")
    for u in range(4):
        a(f"v_cvt_pk_bf16_f32 v{ZR+4*u}, v{Gre+4*u}, v{Gre+4*u+1}")
        a(f"v_cvt_pk_bf16_f32 v{ZR+4*u+1}, v{Gre+4*u+2}, v{Gre+4*u+3}")
        a(f"v_cvt_pk_bf16_f32 v{ZR+4*u+2}, v{Gim+4*u}, v{Gim+4*u+1}")
        a(f"v_cvt_pk_bf16_f32 v{ZR+4*u+3}, v{Gim+4*u+2}, v{Gim+4*u+3}")

    def xbases():
        a(f"""
        s_add_u32 s34, s{sIT}, s{sROT}
        s_and_b32 s34, s34, 3
        s_mul_i32 s34, s34, 20480
        s_add_u32 s34, s34, {XB}
        """)
        for k in range(4):
            a(f"v_add_u32 v{vXa+k}, s34, v{vXl+k}")

    def xreads(buf, ks2):
        for T in range(5):
            a(f"ds_read_b128 {vr(xf[buf]+4*T,4)}, v{vXa+ks2} offset:{T*4096}")

    def wreads(buf, off, parts):
        for pi, vb in enumerate(parts):
            for q in range(2):
                a(f"ds_read_b64_tr_b16 {vr(wf[buf]+4*pi+2*q,2)}, v{vb} offset:{off + q*1024}")

    def mf1(buf):
        for T in range(5):
            if T > 0:
                a(f"v_mfma_f32_16x16x32_bf16 {vr(accq+4*(T-1),4)}, {vr(wf[buf],4)}, {vr(xf[buf]+4*T,4)}, {vr(accq+4*(T-1),4)}")
            a(f"v_mfma_f32_16x16x32_bf16 {vr(acck+4*T,4)}, {vr(wf[buf]+4,4)}, {vr(xf[buf]+4*T,4)}, {vr(acck+4*T,4)}")

    a(f"s_mov_b32 s{sIT}, 0")
    a.label("K1_P1")
    xbases()
    for half in range(2):
        a("s_waitcnt vmcnt(8)")
        a("s_barrier")
        if half == 0:
            a(f"s_cmp_eq_u32 s{sIT}, 0")
            a(f"s_cbranch_scc1 K1_P1_SK")
        a("s_call_b64 s[54:55], K1_ISSUE")
        if half == 0:
            a.label("K1_P1_SK")
        wreads(0, half * 16384, [vWq, vWk])
        xreads(0, 2 * half)
        wreads(1, half * 16384 + 8192, [vWq, vWk])
        a("s_waitcnt lgkmcnt(4)")
        xreads(1, 2 * half + 1)
        mf1(0)
        a("s_waitcnt lgkmcnt(0)")
        mf1(1)
    a(f"""
    v_xor_b32 v{vWq}, 0x8000, v{vWq}
    v_xor_b32 v{vWk}, 0x8000, v{vWk}
    s_add_u32 s{sIT}, s{sIT}, 1
    s_cmp_lt_u32 s{sIT}, 4
    s_cbranch_scc1 K1_P1
    s_barrier
    s_call_b64 s[54:55], K1_ISSUE
    """)
    a(f"""
    v_lshlrev_b32 v{vT0}, 18, v{vN}
    v_lshl_add_u32 v{vT0}, v{vG}, 4, v{vT0}
    s_lshl_b32 s34, s{sS2}, 1
    s_add_u32 s34, s34, s{sH}
    s_lshl_b32 s34, s34, 10
    s_lshl_b32 s35, s{sW}, 8
    s_add_u32 s34, s34, s35
    s_add_u32 s34, s34, {ZOFF}
    """)
    for u in range(4):
        a(f"buffer_store_dwordx4 {vr(ZR+4*u,4)}, v{vT0}, s[20:23], s34 offen offset:{u*64}")
    qf = tmp; kf = tmp + 8; Sc = tmp + 20; Sp = tmp + 36; c0 = tmp + 52; c1 = tmp + 56; mx = tmp + 60; t2 = tmp + 64; sm = tmp + 68
    for rt in range(4):
        a(f"v_cvt_pk_bf16_f32 v{qf+2*rt}, v{accq+4*rt}, v{accq+4*rt+1}")
        a(f"v_cvt_pk_bf16_f32 v{qf+2*rt+1}, v{accq+4*rt+2}, v{accq+4*rt+3}")
    for T in range(5):
        a(f"v_cvt_pk_bf16_f32 v{kf+2*T}, v{acck+4*T}, v{acck+4*T+1}")
        a(f"v_cvt_pk_bf16_f32 v{kf+2*T+1}, v{acck+4*T+2}, v{acck+4*T+3}")
    for rt in range(4):
        a(f"v_mfma_f32_16x16x16_bf16 {vr(Sp+4*rt,4)}, {vr(kf+2*rt,2)}, {vr(qf+2*rt,2)}, 0")
        a(f"v_mfma_f32_16x16x16_bf16 {vr(Sc+4*rt,4)}, {vr(kf+2*rt+2,2)}, {vr(qf+2*rt,2)}, 0")
    a(f"s_cmp_lg_u32 s{sRB}, 0")
    a(f"s_cbranch_scc1 K1_NOMASK")
    for r in range(4):
        a(f"v_mov_b32 v{Sp+r}, 0xff800000")
    a.label("K1_NOMASK")
    for rt in range(4):
        for r in range(4):
            a(f"v_cndmask_b32 v{Sc+4*rt+r}, v{Sp+4*rt+r}, v{Sc+4*rt+r}, s[{44+2*r}:{45+2*r}]")
    for rt in range(4):
        a(f"v_cndmask_b32 v{c0+rt}, v{Sc+4*rt}, v{Sc+4*rt+1}, s[52:53]")
        a(f"v_cndmask_b32 v{c1+rt}, v{Sc+4*rt+2}, v{Sc+4*rt+3}, s[52:53]")
    for rt in range(4):
        a(f"v_cvt_pk_bf16_f32 v{t2+rt}, v{c0+rt}, v{c1+rt}")
    for rt in range(4):
        a(f"v_lshlrev_b32 v{c0+rt}, 16, v{t2+rt}")
        a(f"v_and_b32 v{c1+rt}, 0xffff0000, v{t2+rt}")
    for rt in range(4):
        a(f"v_max_f32 v{mx+rt}, v{c0+rt}, v{c1+rt}")

    def allreduce(reg, op):
        for sw in ("v_permlane32_swap_b32", "v_permlane16_swap_b32"):
            for rt in range(4):
                a(f"v_mov_b32 v{t2+rt}, v{reg+rt}")
            for rt in range(4):
                a(f"{sw} v{reg+rt}, v{t2+rt}")
            for rt in range(4):
                a(f"{op} v{reg+rt}, v{reg+rt}, v{t2+rt}")
    allreduce(mx, "v_max_f32")
    KS = 0.25 * math.log2(math.e)
    a(f"s_mov_b32 s34, {f32(KS)}")
    for rt in range(4):
        a(f"v_sub_f32 v{c0+rt}, v{c0+rt}, v{mx+rt}")
        a(f"v_sub_f32 v{c1+rt}, v{c1+rt}, v{mx+rt}")
    for rt in range(4):
        a(f"v_mul_f32 v{c0+rt}, s34, v{c0+rt}")
        a(f"v_mul_f32 v{c1+rt}, s34, v{c1+rt}")
    for rt in range(4):
        a(f"v_exp_f32 v{c0+rt}, v{c0+rt}")
        a(f"v_exp_f32 v{c1+rt}, v{c1+rt}")
    for rt in range(4):
        a(f"v_add_f32 v{sm+rt}, v{c0+rt}, v{c1+rt}")
    allreduce(sm, "v_add_f32")
    for rt in range(4):
        a(f"v_rcp_f32 v{sm+rt}, v{sm+rt}")
    for rt in range(4):
        a(f"v_mul_f32 v{c0+rt}, v{c0+rt}, v{sm+rt}")
        a(f"v_mul_f32 v{c1+rt}, v{c1+rt}, v{sm+rt}")
    for rt in range(4):
        a(f"v_cvt_pk_bf16_f32 v{c0+rt}, v{c0+rt}, v{c0+rt}")
        a(f"v_cvt_pk_bf16_f32 v{c1+rt}, v{c1+rt}, v{c1+rt}")
    for rt in range(4):
        a(f"v_and_b32 v{Preg+4*rt}, v{c0+rt}, v{mprev}")
        a(f"v_and_b32 v{Preg+4*rt+1}, v{c1+rt}, v{mprev+1}")
        a(f"v_and_b32 v{Preg+4*rt+2}, v{c0+rt}, v{mcur}")
        a(f"v_and_b32 v{Preg+4*rt+3}, v{c1+rt}, v{mcur+1}")
    a(f"""
    s_mov_b32 s{sIT}, 0
    s_waitcnt vmcnt(4)
    s_barrier
    """)

    def mf2(buf):
        for T in range(5):
            a(f"v_mfma_f32_16x16x32_bf16 {vr(accv+4*T,4)}, {vr(xf[buf]+4*T,4)}, {vr(wf[buf],4)}, {vr(accv+4*T,4)}")

    a.label("K1_P2")
    xbases()
    def rd2(buf, ks4):
        wreads(buf, (ks4 & 1) * 8192, [vWq if ks4 < 2 else vWk])
        xreads(buf, ks4)
    rd2(0, 0)
    rd2(1, 1)
    a("s_waitcnt lgkmcnt(7)")
    mf2(0)
    rd2(0, 2)
    a("s_waitcnt lgkmcnt(7)")
    mf2(1)
    rd2(1, 3)
    a("s_waitcnt lgkmcnt(7)")
    mf2(0)
    a("s_waitcnt lgkmcnt(0)")
    mf2(1)
    a(f"""
    v_add_u32 v{vWq}, 0x4000, v{vWq}
    v_add_u32 v{vWk}, 0x4000, v{vWk}
    s_add_u32 s{sIT}, s{sIT}, 1
    s_cmp_lt_u32 s{sIT}, 4
    s_cbranch_scc1 K1_P2
    """)
    VF = tmp; Oa = tmp + 12; Op = tmp + 28
    for T in range(5):
        a(f"v_cvt_pk_bf16_f32 v{VF+2*T}, v{accv+4*T}, v{accv+4*T+1}")
        a(f"v_cvt_pk_bf16_f32 v{VF+2*T+1}, v{accv+4*T+2}, v{accv+4*T+3}")
    for rt in range(4):
        a(f"v_mfma_f32_16x16x32_bf16 {vr(Oa+4*rt,4)}, {vr(VF+2*rt,4)}, {vr(Preg+4*rt,4)}, 0")
    a(f"""
    v_and_b32 v{vT0}, 1, v{vG}
    v_lshlrev_b32 v{vT0}, 14, v{vT0}
    v_lshrrev_b32 v{vT1}, 1, v{vG}
    v_lshl_add_u32 v{vT0}, v{vT1}, 8, v{vT0}
    v_lshl_add_u32 v{vT0}, v{vN}, 4, v{vT0}
    s_lshl_b32 s34, s{sRB}, 16
    s_lshl_b32 s35, s{sHQ}, 2
    s_add_u32 s35, s35, s{sW}
    s_lshl_b32 s35, s35, 9
    s_add_u32 s34, s34, s35
    s_add_u32 s35, s34, 32768
    """)
    for rt in range(4):
        a(f"v_cvt_pk_bf16_f32 v{Op+2*rt}, v{Oa+4*rt}, v{Oa+4*rt+1}")
        a(f"v_cvt_pk_bf16_f32 v{Op+2*rt+1}, v{Oa+4*rt+2}, v{Oa+4*rt+3}")
    for pr in range(2):
        a(f"v_permlane16_swap_b32 v{Op+4*pr}, v{Op+4*pr+2}")
        a(f"v_permlane16_swap_b32 v{Op+4*pr+1}, v{Op+4*pr+3}")
    a(f"buffer_store_dwordx4 {vr(Op,4)}, v{vT0}, s[20:23], s34 offen")
    a(f"buffer_store_dwordx4 {vr(Op+4,4)}, v{vT0}, s[20:23], s35 offen")
    a.label("K1_END")
    a("s_endpgm")
    a.label("K1_ISSUE")
    a(f"""
    s_lshr_b32 s30, s{sM}, 1
    s_add_u32 s30, s30, s{sROT}
    s_and_b32 s30, s30, 3
    s_lshl_b32 s30, s30, 1
    s_and_b32 s31, s{sM}, 1
    s_add_u32 s30, s30, s31
    s_mul_i32 s30, s30, 196608
    s_add_u32 s31, s{sM}, s{sROT}
    s_and_b32 s31, s31, 3
    s_mul_i32 s31, s31, 393216
    s_add_u32 s31, s31, 2048
    s_cmp_lt_u32 s{sM}, 8
    s_cselect_b32 s30, s30, s31
    s_cselect_b64 s[56:57], -1, 0
    s_add_u32 s30, s30, s{sHQ128}
    s_and_b32 s31, s{sM}, 3
    s_lshl_b32 s31, s31, 14
    s_add_u32 m0, s31, s{sWm0}
    v_cndmask_b32 v{vWcur}, v{vWvoff}, v{vWoff}, s[56:57]
    s_add_u32 s{sM}, s{sM}, 1
    """)
    for j in range(4):
        a(f"buffer_load_dwordx4 v{vWcur}, s[16:19], s30 offen lds")
        if j < 3:
            a("s_add_u32 m0, m0, 4096")
            a("s_add_u32 s30, s30, 49152")
    a("s_setpc_b64 s[54:55]")
    a.pad()
    return a.text(), nv


OB2 = 65536
ZB2 = 131072


def k2():
    a = Asm()
    V = VA(0)
    vL = V(); vN = V(); vG = V(); vT0 = V(); vT1 = V(); vT2 = V(); vT3 = V()
    vOff = V(); vWoOff = V(); vZoff = V(); vOrd = V()
    vWa = V(8); vZa = V(8)
    BM = V(32)
    acc = V(16); acc2 = V(16)
    of = [V(4), V(4)]; af = [V(16), V(16)]
    tmp = V(32)
    nv = V.n
    sW, sRB, sCB, sT1, sTH, sA = 24, 25, 26, 27, 28, 29
    sIT = 41
    a(f"""
    s_cmp_ge_u32 s2, 256
    s_cbranch_scc1 K2_END
    s_load_dwordx2 s[8:9], s[0:1], 56
    s_load_dwordx2 s[12:13], s[0:1], 64
    s_load_dwordx2 s[20:21], s[0:1], 80
    v_lshrrev_b32 v{vT0}, 6, v0
    v_and_b32 v{vL}, 63, v0
    v_readfirstlane_b32 s{sW}, v{vT0}
    s_mov_b32 s10, 0x80000
    s_mov_b32 s11, 0x20000
    s_mov_b32 s14, 0x400000
    s_mov_b32 s15, 0x20000
    s_mov_b32 s22, {WS_BYTES}
    s_mov_b32 s23, 0x20000
    s_and_b32 s30, s2, 7
    s_lshr_b32 s31, s2, 3
    s_lshr_b32 s32, s30, 1
    s_lshl_b32 s32, s32, 3
    s_lshr_b32 s33, s31, 2
    s_add_u32 s{sRB}, s32, s33
    s_and_b32 s32, s30, 1
    s_lshl_b32 s32, s32, 2
    s_and_b32 s33, s31, 3
    s_add_u32 s{sCB}, s32, s33
    s_lshl_b32 s32, s30, 5
    s_add_u32 s32, s32, s31
    s_and_b32 s{sTH}, s32, 1
    s_bfe_u32 s{sA}, s32, 0x30001
    s_lshr_b32 s{sT1}, s32, 4
    v_and_b32 v{vN}, 15, v{vL}
    v_lshrrev_b32 v{vG}, 4, v{vL}
    v_lshlrev_b32 v{vOff}, 4, v{vL}
    """)
    a(f"""
    s_lshl_b32 s34, s{sW}, 2
    v_add_u32 v{vT0}, s34, v{vG}
    s_lshr_b32 s34, s{sW}, 1
    s_lshl_b32 s34, s34, 3
    v_lshl_add_u32 v{vT1}, v{vG}, 1, s34
    v_xor_b32 v{vT1}, v{vN}, v{vT1}
    v_and_b32 v{vT2}, 7, v{vT1}
    v_lshlrev_b32 v{vT2}, 4, v{vT2}
    v_lshl_add_u32 v{vT2}, v{vT0}, 10, v{vT2}
    v_lshrrev_b32 v{vT1}, 3, v{vT1}
    v_lshl_add_u32 v{vWoOff}, v{vT1}, 18, v{vT2}
    s_lshl_b32 s35, s{sCB}, 7
    s_lshl_b32 m0, s{sW}, 10
    s_waitcnt lgkmcnt(0)
    """)
    for j in range(16):
        a(f"buffer_load_dwordx4 v{vWoOff}, s[8:11], s35 offen lds")
        if j < 15:
            a("s_add_u32 m0, m0, 4096")
            a("s_add_u32 s35, s35, 16384")
    a(f"""
    s_lshl_b32 s35, s{sRB}, 2
    s_add_u32 s35, s35, s{sW}
    s_lshl_b32 s35, s35, 14
    s_lshl_b32 s34, s{sW}, 14
    s_add_u32 m0, s34, {OB2}
    """)
    for j in range(16):
        if j % 4 == 0 and j > 0:
            a("s_add_u32 m0, m0, 4096")
            a("s_add_u32 s35, s35, 4096")
        a(f"buffer_load_dwordx4 v{vOff}, s[20:23], s35 offen offset:{(j%4)*1024} lds")
    a(f"""
    v_lshlrev_b32 v{vT0}, 2, v{vG}
    v_xor_b32 v{vT0}, v{vN}, v{vT0}
    v_and_b32 v{vT1}, 7, v{vT0}
    v_lshlrev_b32 v{vT1}, 4, v{vT1}
    v_lshrrev_b32 v{vT0}, 3, v{vT0}
    v_lshl_add_u32 v{vT1}, v{vT0}, 10, v{vT1}
    v_lshl_add_u32 v{vZoff}, v{vG}, 11, v{vT1}
    s_lshl_b32 s35, s{sT1}, 18
    s_lshl_b32 s34, s{sW}, 16
    s_add_u32 s35, s35, s34
    s_lshl_b32 s34, s{sA}, 7
    s_add_u32 s35, s35, s34
    s_add_u32 s35, s35, {ZOFF}
    s_lshl_b32 s34, s{sW}, 13
    s_add_u32 m0, s34, {ZB2}
    """)
    for j in range(8):
        a(f"buffer_load_dwordx4 v{vZoff}, s[20:23], s35 offen lds")
        if j < 7:
            a("s_add_u32 m0, m0, 1024")
            a("s_add_u32 s35, s35, 8192")
    tf = vT0; d16 = vT1; phi = vT2
    a1 = tmp; a2 = tmp + 4; cs = tmp + 8; sn = tmp + 12
    a(f"""
    s_lshl_b32 s34, s{sTH}, 6
    s_lshl_b32 s35, s{sW}, 4
    s_add_u32 s34, s34, s35
    v_add_u32 v{tf}, s34, v{vN}
    v_lshlrev_b32 v{tf}, 4, v{tf}
    v_add_u32 v{vOrd}, s{sT1}, v{tf}
    v_cvt_f32_u32 v{tf}, v{vOrd}
    v_mul_f32 v{tf}, {f32(1/2048)}, v{tf}
    v_mul_f32 v{d16}, {f32(16.0)}, v{tf}
    v_and_b32 v{phi}, 1, v{vG}
    v_cvt_f32_u32 v{phi}, v{phi}
    v_mul_f32 v{phi}, {f32(0.25)}, v{phi}
    v_lshlrev_b32 v{vT3}, 2, v{vG}
    v_cvt_f32_u32 v{vT3}, v{vT3}
    v_mul_f32 v{vT3}, v{vT3}, v{tf}
    """)
    for jj in range(4):
        if jj == 0:
            a(f"v_mov_b32 v{cs}, v{vT3}")
        else:
            a(f"v_fmamk_f32 v{cs+jj}, v{tf}, {f32(float(jj))}, v{vT3}")
    for jj in range(4):
        a(f"v_sub_f32 v{a1+jj}, v{cs+jj}, v{phi}")
        a(f"v_add_f32 v{a2+jj}, v{cs+jj}, v{phi}")
    for kap in range(8):
        for jj in range(4):
            a(f"v_cos_f32 v{cs+jj}, v{a1+jj}")
            a(f"v_sin_f32 v{sn+jj}, v{a2+jj}")
        if kap < 7:
            for jj in range(4):
                a(f"v_add_f32 v{a1+jj}, v{a1+jj}, v{d16}")
                a(f"v_add_f32 v{a2+jj}, v{a2+jj}, v{d16}")
        a(f"v_cvt_pk_bf16_f32 v{BM+4*kap}, v{cs}, v{cs+1}")
        a(f"v_cvt_pk_bf16_f32 v{BM+4*kap+1}, v{cs+2}, v{cs+3}")
        a(f"v_cvt_pk_bf16_f32 v{BM+4*kap+2}, v{sn}, v{sn+1}")
        a(f"v_cvt_pk_bf16_f32 v{BM+4*kap+3}, v{sn+2}, v{sn+3}")
    a(f"""
    v_bfe_u32 v{vT0}, v{vL}, 2, 2
    v_and_b32 v{vT1}, 3, v{vL}
    v_lshl_add_u32 v{vT2}, v{vG}, 3, v{vT0}
    v_lshlrev_b32 v{vT2}, 8, v{vT2}
    v_lshrrev_b32 v{vT3}, 1, v{vT1}
    v_lshlrev_b32 v{tmp}, 1, v{vT0}
    v_xor_b32 v{vT3}, v{vT3}, v{tmp}
    v_and_b32 v{tmp}, 1, v{vG}
    v_lshlrev_b32 v{tmp+1}, 3, v{tmp}
    v_xor_b32 v{vT3}, v{vT3}, v{tmp+1}
    v_lshl_add_u32 v{vT2}, v{vT3}, 4, v{vT2}
    v_and_b32 v{vT3}, 1, v{vT1}
    v_lshl_add_u32 v{vWa}, v{vT3}, 3, v{vT2}
    """)
    for i in range(1, 8):
        a(f"v_xor_b32 v{vWa+i}, {(i&3)*32 + (i>>2)*128}, v{vWa}")
    a(f"""
    v_lshl_add_u32 v{vT2}, v{vG}, 2, v{vT0}
    v_lshlrev_b32 v{vT2}, 8, v{vT2}
    v_lshlrev_b32 v{vT3}, 2, v{vT0}
    v_xor_b32 v{vT3}, v{vT3}, v{vT1}
    v_lshl_add_u32 v{vT2}, v{vT3}, 4, v{vT2}
    v_add_u32 v{vT2}, v{vT2}, v{tmp+1}
    v_add_u32 v{vZa}, {ZB2}, v{vT2}
    """)
    for i in range(1, 8):
        tau, q = i >> 1, i & 1
        a(f"v_xor_b32 v{vZa+i}, {128*(tau&1) + 64*(tau>>1) + 8*q}, v{vZa}")
    a(f"""
    s_lshl_b32 s34, s{sW}, 14
    s_add_u32 s34, s34, {OB2}
    v_add_u32 v{vOff}, s34, v{vOff}
    """)
    for i in range(32):
        a(f"v_mov_b32 v{acc+i}, 0")
    a(f"""
    s_mov_b32 s{sIT}, 0
    s_waitcnt vmcnt(0)
    s_barrier
    """)
    def zreads(buf, kap):
        for tau in range(4):
            for q in range(2):
                a(f"ds_read_b64_tr_b16 {vr(af[buf]+4*tau+2*q,2)}, v{vZa+2*tau+q} offset:{kap*4096}")
    zreads(0, 0)
    for kap in range(8):
        if kap < 7:
            zreads((kap + 1) & 1, kap + 1)
            a("s_waitcnt lgkmcnt(8)")
        else:
            a("s_waitcnt lgkmcnt(0)")
        for tau in range(4):
            a(f"v_mfma_f32_16x16x32_bf16 {vr(acc2+4*tau,4)}, {vr(af[kap&1]+4*tau,4)}, {vr(BM+4*kap,4)}, {vr(acc2+4*tau,4)}")

    def epilogue(ac, voff, soff, pk):
        for tau in range(4):
            a(f"v_cvt_pk_bf16_f32 v{pk+2*tau}, v{ac+4*tau}, v{ac+4*tau+1}")
            a(f"v_cvt_pk_bf16_f32 v{pk+2*tau+1}, v{ac+4*tau+2}, v{ac+4*tau+3}")
        for pr in range(2):
            a(f"v_permlane16_swap_b32 v{pk+4*pr}, v{pk+4*pr+2}")
            a(f"v_permlane16_swap_b32 v{pk+4*pr+1}, v{pk+4*pr+3}")
        a(f"buffer_store_dwordx4 {vr(pk,4)}, v{voff}, s[12:15], {soff} offen")
        a(f"buffer_store_dwordx4 {vr(pk+4,4)}, v{voff}, s[12:15], {soff} offen offset:64")
    a(f"""
    v_and_b32 v{vT0}, 1, v{vG}
    v_lshlrev_b32 v{vT0}, 5, v{vT0}
    v_lshrrev_b32 v{vT1}, 1, v{vG}
    v_lshl_add_u32 v{vT0}, v{vT1}, 4, v{vT0}
    v_lshl_add_u32 v{vT1}, v{vOrd}, 11, v{vT0}
    s_lshl_b32 s34, s{sA}, 7
    """)
    epilogue(acc2, vT1, "s34", tmp)
    a.label("K2_B2")
    for part in range(2):
        a(f"ds_read_b128 {vr(of[part],4)}, v{vOff} offset:{part*8192}")
    for part in range(2):
        for tau in range(4):
            for q in range(2):
                if part == 1 and tau >= 2:
                    continue
                a(f"ds_read_b64_tr_b16 {vr(af[part]+4*tau+2*q,2)}, v{vWa+4*part+tau} offset:{q*1024}")
    a("s_waitcnt lgkmcnt(4)")
    for tau in range(2, 4):
        for q in range(2):
            a(f"ds_read_b64_tr_b16 {vr(af[1]+4*tau+2*q,2)}, v{vWa+4+tau} offset:{q*1024}")
    for tau in range(4):
        a(f"v_mfma_f32_16x16x32_bf16 {vr(acc+4*tau,4)}, {vr(af[0]+4*tau,4)}, {vr(of[0],4)}, {vr(acc+4*tau,4)}")
    for i in range(8):
        a(f"v_add_u32 v{vWa+i}, 0x2000, v{vWa+i}")
    a(f"v_add_u32 v{vOff}, 0x400, v{vOff}")
    a("s_waitcnt lgkmcnt(0)")
    for tau in range(4):
        a(f"v_mfma_f32_16x16x32_bf16 {vr(acc+4*tau,4)}, {vr(af[1]+4*tau,4)}, {vr(of[1],4)}, {vr(acc+4*tau,4)}")
    a(f"""
    s_add_u32 s{sIT}, s{sIT}, 1
    s_cmp_lt_u32 s{sIT}, 8
    s_cbranch_scc1 K2_B2
    v_lshl_add_u32 v{vT1}, v{vN}, 11, v{vT0}
    s_lshl_b32 s34, s{sRB}, 2
    s_add_u32 s34, s34, s{sW}
    s_lshl_b32 s34, s34, 15
    s_lshl_b32 s35, s{sCB}, 7
    s_add_u32 s34, s34, s35
    s_add_u32 s34, s34, 1024
    """)
    epilogue(acc, vT1, "s34", tmp + 8)
    a.label("K2_END")
    a("s_endpgm")
    a.pad()
    return a.text(), nv


HEADER = """; Kernarg layout for this problem (88 bytes, ptrs only, base s[0:1]):
"""


def kd(name, nv, ns=64):
    nv4 = (nv + 3) // 4 * 4
    return f""".amdhsa_kernel {name}
  .amdhsa_next_free_vgpr {nv4}
  .amdhsa_next_free_sgpr {ns}
  .amdhsa_accum_offset {nv4}
  .amdhsa_group_segment_fixed_size 0
  .amdhsa_kernarg_size 88
  .amdhsa_user_sgpr_count 2
  .amdhsa_user_sgpr_kernarg_segment_ptr 1
  .amdhsa_system_sgpr_workgroup_id_x 1
.end_amdhsa_kernel
"""


def main(out):
    t1, n1 = k1()
    t2, n2 = k2()
    s = HEADER
    s += "; @launch kernel=fn_stage1_kernel grid=(256,1,1) block=(256,1,1) lds=163840\n"
    s += "; @launch kernel=fn_stage2_kernel grid=(256,1,1) block=(256,1,1) lds=163840\n"
    s += '.amdgcn_target "amdgcn-amd-amdhsa--gfx950"\n.text\n'
    for nm, t in (("fn_stage1_kernel", t1), ("fn_stage2_kernel", t2)):
        s += f".globl {nm}\n.p2align 8\n.type {nm},@function\n{nm}:\n{t}"
    s += '.section .rodata,"a"\n.p2align 6\n' + kd("fn_stage1_kernel", n1) + ".p2align 6\n" + kd("fn_stage2_kernel", n2)
    open(out, "w").write(s)
    print("vgprs", n1, n2)


if __name__ == "__main__":
    main(sys.argv[1] if len(sys.argv) > 1 else f"cdna_kernels/{NAME}.s")
```

```python
import struct, sys, math
sys.path.insert(0, "gen")
from asmlib import Asm

NAME = "concat_heads__spectral_fnet__sliding_local_dilated__prompt"


def f32(x):
    return "0x%08x" % struct.unpack("<I", struct.pack("<f", x))[0]


class VA:
    def __init__(self, start=0):
        self.n = start

    def __call__(self, cnt=1, align=None):
        al = align or (2 if cnt >= 2 else 1)
        if cnt >= 4 and align is None:
            al = 4
        self.n = (self.n + al - 1) // al * al
        r = self.n
        self.n += cnt
        return r


def vr(b, n=1):
    return f"v{b}" if n == 1 else f"v[{b}:{b+n-1}]"


import os
PROF = int(os.environ.get("PROF", "0"))
EXTRA = int(os.environ.get("EXTRA", "0"))


def stamp(a, i):
    if PROF:
        a(f"s_memrealtime s[{70+2*i}:{71+2*i}]")


def prof_end(a, n, sW):
    if not PROF:
        return
    a(f"""
    s_load_dwordx2 s[60:61], s[0:1], 72
    s_mov_b32 s62, 256
    s_mov_b32 s63, 0x20000
    s_waitcnt vmcnt(0)
    s_memrealtime s[{70+2*n}:{71+2*n}]
    s_waitcnt lgkmcnt(0)
    s_mov_b64 exec, 1
    s_not_b32 s64, s70
    v_mov_b32 v1, s64
    v_mov_b32 v2, s{70+2*n}
    v_mov_b32 v0, 0
    s_nop 4
    buffer_atomic_umax v1, v0, s[60:63], 0 offen
    buffer_atomic_umax v2, v0, s[60:63], 0 offen offset:4
    s_cmp_lg_u32 s2, 0
    s_cbranch_scc1 PE_{n}_{sW}_{id(a)}
    s_cmp_lg_u32 s{sW}, 0
    s_cbranch_scc1 PE_{n}_{sW}_{id(a)}
    """)
    for i in range(n + 1):
        a(f"v_mov_b32 v1, s{70+2*i}")
        a(f"buffer_store_dword v1, v0, s[60:63], 0 offen offset:{8+4*i}")
    a.label(f"PE_{n}_{sW}_{id(a)}")


OOFF = 0
ZOFF = 2 << 20
WS_BYTES = 6 << 20

XB = 65536
A1B = 65536 + 81920


def k1():
    a = Asm()
    V = VA(0)
    vL = V(); vN = V(); vG = V(); vT0 = V(); vT1 = V(); vT2 = V(); vT3 = V()
    vAoff = V(); vXoff = V(); vWoff = V(); vWvoff = V(); vWcur = V()
    vXl = V(4); vXa = V(4); vWq = V(); vWk = V()
    Hc = V(4); Hs = V(4); tc = V(4); ts = V(4); Fre = V(4); Fim = V(4)
    ZR = V(16)
    accq = V(16); acck = V(20); accv = V(20)
    mcur = V(2); mprev = V(2)
    Preg = V(16)
    tmp = V(96)
    xf = [tmp, tmp + 20]; wf = [tmp + 40, tmp + 48]
    nv = V.n
    sW, sRB, sHQ, sROT, sS2, sH = 24, 25, 26, 27, 28, 29
    sM, sIT, sHQ128, sWm0 = 40, 41, 42, 43

    a(f"""
    s_cmp_ge_u32 s2, 256
    s_cbranch_scc1 K1_END
    """)
    stamp(a, 0)
    a(f"""
    s_load_dwordx2 s[8:9], s[0:1], 0
    s_load_dwordx2 s[12:13], s[0:1], 40
    s_load_dwordx2 s[16:17], s[0:1], 48
    s_load_dwordx2 s[20:21], s[0:1], 80
    v_lshrrev_b32 v{vT0}, 6, v0
    v_and_b32 v{vL}, 63, v0
    v_readfirstlane_b32 s{sW}, v{vT0}
    s_mov_b32 s10, 0x200000
    s_mov_b32 s11, 0x20000
    s_mov_b32 s14, 0x200000
    s_mov_b32 s15, 0x20000
    s_mov_b32 s18, 0x180000
    s_mov_b32 s19, 0x20000
    s_mov_b32 s22, {WS_BYTES}
    s_mov_b32 s23, 0x20000
    s_and_b32 s30, s2, 7
    s_lshr_b32 s31, s2, 3
    s_lshr_b32 s32, s30, 1
    s_lshl_b32 s32, s32, 3
    s_lshr_b32 s33, s31, 2
    s_add_u32 s{sRB}, s32, s33
    s_and_b32 s32, s30, 1
    s_lshl_b32 s32, s32, 2
    s_and_b32 s33, s31, 3
    s_add_u32 s{sHQ}, s32, s33
    s_and_b32 s{sROT}, s{sRB}, 3
    s_lshl_b32 s32, s30, 5
    s_add_u32 s32, s32, s31
    s_lshr_b32 s{sS2}, s32, 1
    s_and_b32 s{sH}, s32, 1
    s_lshl_b32 s{sHQ128}, s{sHQ}, 7
    s_lshl_b32 s{sWm0}, s{sW}, 10
    v_and_b32 v{vN}, 15, v{vL}
    v_lshrrev_b32 v{vG}, 4, v{vL}
    v_lshlrev_b32 v{vAoff}, 4, v{vL}
    s_lshl_b32 s32, s{sW}, 9
    s_add_u32 s32, s32, s{sS2}
    s_lshl_b32 s32, s32, 10
    s_lshl_b32 s33, s{sW}, 12
    s_add_u32 s33, s33, {A1B}
    s_mov_b32 m0, s33
    s_waitcnt lgkmcnt(0)
    """)
    for i in range(4):
        a(f"buffer_load_dwordx4 v{vAoff}, s[8:11], s32 offen lds")
        if i < 3:
            a(f"s_add_u32 m0, m0, 1024")
            a(f"s_add_u32 s32, s32, 131072")
    a(f"""
    s_lshl_b32 s34, s{sW}, 2
    v_add_u32 v{vT0}, s34, v{vG}
    v_xor_b32 v{vT1}, v{vN}, v{vT0}
    v_lshlrev_b32 v{vT1}, 4, v{vT1}
    v_lshl_add_u32 v{vXoff}, v{vT0}, 10, v{vT1}
    s_lshl_b32 s35, s{sRB}, 16
    s_sub_u32 s35, s35, 16384
    s_max_i32 s36, s35, 0
    s_add_u32 s37, s{sWm0}, {XB}
    """)
    for i in range(5):
        for kc in range(4):
            a(f"s_add_u32 m0, s37, {kc*20480 + i*4096}")
            if i == 0:
                a(f"s_add_u32 s38, s36, {kc*256}")
            else:
                a(f"s_add_u32 s38, s35, {i*16384 + kc*256}")
            a(f"buffer_load_dwordx4 v{vXoff}, s[12:15], s38 offen lds")
    a(f"""
    s_lshr_b32 s34, s{sW}, 1
    s_lshl_b32 s34, s34, 3
    v_lshl_add_u32 v{vT1}, v{vG}, 1, s34
    v_xor_b32 v{vT1}, v{vN}, v{vT1}
    v_mul_u32_u24 v{vT0}, 3072, v{vT0}
    v_and_b32 v{vT2}, 7, v{vT1}
    v_lshl_add_u32 v{vT0}, v{vT2}, 4, v{vT0}
    v_lshrrev_b32 v{vT1}, 3, v{vT1}
    v_lshl_add_u32 v{vWoff}, v{vT1}, 10, v{vT0}
    v_mul_u32_u24 v{vT1}, 196608, v{vT1}
    v_add_u32 v{vWvoff}, v{vT1}, v{vT0}
    s_mov_b32 s{sM}, 0
    s_call_b64 s[54:55], K1_ISSUE
    s_call_b64 s[54:55], K1_ISSUE
    s_call_b64 s[54:55], K1_ISSUE
    s_call_b64 s[54:55], K1_ISSUE
    """)
    ang = tmp; cs = tmp + 8; sn = tmp + 16
    e1f = vT0; g4f = vT1; nf = vT2
    a(f"""
    s_lshl_b32 s34, s{sH}, 4
    v_add_u32 v{e1f}, s34, v{vN}
    v_cvt_f32_u32 v{e1f}, v{e1f}
    v_lshlrev_b32 v{g4f}, 2, v{vG}
    v_cvt_f32_u32 v{g4f}, v{g4f}
    v_cvt_f32_u32 v{nf}, v{vN}
    v_mul_f32 v{e1f}, {f32(1/32)}, v{e1f}
    v_mul_f32 v{vT3}, v{g4f}, v{e1f}
    """)
    for j, jp in enumerate([0, 1, 2, 3, 16, 17, 18, 19]):
        if jp == 0:
            a(f"v_mov_b32 v{ang+j}, v{vT3}")
        else:
            a(f"v_fmamk_f32 v{ang+j}, v{e1f}, {f32(float(jp))}, v{vT3}")
    for j in range(8):
        a(f"v_cos_f32 v{cs+j}, v{ang+j}")
        a(f"v_sin_f32 v{sn+j}, v{ang+j}")
    for j in range(4):
        a(f"v_cvt_pk_bf16_f32 v{Hc+j}, v{cs+2*j}, v{cs+2*j+1}")
        a(f"v_cvt_pk_bf16_f32 v{Hs+j}, -v{sn+2*j}, -v{sn+2*j+1}")
    for r in range(4):
        a(f"v_mul_f32 v{ang+r}, {f32(1/16)}, v{ang+r}")
    for r in range(4):
        a(f"v_cos_f32 v{tc+r}, v{ang+r}")
        a(f"v_sin_f32 v{ts+r}, v{ang+r}")
    a(f"v_mul_f32 v{nf}, {f32(1/16)}, v{nf}")
    a(f"v_mul_f32 v{ang}, v{g4f}, v{nf}")
    for jj in range(1, 4):
        a(f"v_fmamk_f32 v{ang+jj}, v{nf}, {f32(float(jj))}, v{ang}")
    for jj in range(4):
        a(f"v_cos_f32 v{cs+jj}, v{ang+jj}")
        a(f"v_sin_f32 v{sn+jj}, v{ang+jj}")
    for jj in range(4):
        a(f"v_cvt_pk_bf16_f32 v{Fre+jj}, v{cs+jj}, v{sn+jj}")
        a(f"v_cvt_pk_bf16_f32 v{Fim+jj}, -v{sn+jj}, v{cs+jj}")
    a(f"""
    v_xor_b32 v{vT0}, v{vN}, v{vG}
    v_lshlrev_b32 v{vT0}, 4, v{vT0}
    v_lshl_add_u32 v{vXl}, v{vN}, 8, v{vT0}
    v_xor_b32 v{vXl+1}, 64, v{vXl}
    v_xor_b32 v{vXl+2}, 128, v{vXl}
    v_xor_b32 v{vXl+3}, 192, v{vXl}
    """)
    a(f"""
    v_bfe_u32 v{vT0}, v{vL}, 2, 2
    v_and_b32 v{vT1}, 3, v{vL}
    v_lshl_add_u32 v{vT2}, v{vG}, 3, v{vT0}
    v_lshlrev_b32 v{vT2}, 8, v{vT2}
    v_lshrrev_b32 v{vT3}, 1, v{vT1}
    s_lshl_b32 s34, s{sW}, 1
    v_add_u32 v{vT3}, s34, v{vT3}
    v_lshlrev_b32 v{vT0}, 1, v{vT0}
    v_xor_b32 v{vT3}, v{vT3}, v{vT0}
    v_and_b32 v{vT0}, 1, v{vG}
    v_lshlrev_b32 v{vT0}, 3, v{vT0}
    v_xor_b32 v{vT3}, v{vT3}, v{vT0}
    v_lshl_add_u32 v{vT2}, v{vT3}, 4, v{vT2}
    v_and_b32 v{vT1}, 1, v{vT1}
    v_lshl_add_u32 v{vWq}, v{vT1}, 3, v{vT2}
    v_xor_b32 v{vWk}, 128, v{vWq}
    """)
    a(f"v_lshlrev_b32 v{vT0}, 2, v{vG}")
    for r in range(4):
        a(f"v_add_u32 v{vT1}, {r}, v{vT0}")
        a(f"v_cmp_le_u32 s[{44+2*r}:{45+2*r}], v{vT1}, v{vN}")
    a(f"""
    v_and_b32 v{vT1}, 1, v{vN}
    v_cmp_eq_u32 s[52:53], 1, v{vT1}
    v_mov_b32 v{vT2}, 0xffff
    v_mov_b32 v{vT3}, 0xffff0000
    v_cndmask_b32 v{vT2}, v{vT2}, v{vT3}, s[52:53]
    v_add_u32 v{vT0}, v{vT0}, v{vT1}
    v_cmp_le_u32 vcc, v{vT0}, v{vN}
    v_cndmask_b32 v{mcur}, 0, v{vT2}, vcc
    v_cndmask_b32 v{mprev}, v{vT2}, 0, vcc
    v_add_u32 v{vT0}, 2, v{vT0}
    v_cmp_le_u32 vcc, v{vT0}, v{vN}
    v_cndmask_b32 v{mcur+1}, 0, v{vT2}, vcc
    v_cndmask_b32 v{mprev+1}, v{vT2}, 0, vcc
    """)
    for i in range(56):
        a(f"v_mov_b32 v{accq+i}, 0")
    XA = tmp; Dre = tmp + 16; Dim = tmp + 32; PA = tmp + 48; Gre = tmp + 64; Gim = tmp + 80
    vRd = vT0; vEx = vT1
    a(f"""
    s_lshl_b32 s34, s{sW}, 12
    s_add_u32 s34, s34, {A1B}
    v_lshl_add_u32 v{vRd}, v{vL}, 3, s34
    s_waitcnt vmcnt(36)
    """)
    stamp(a, 1)
    for i in range(4):
        a(f"ds_read_b64_tr_b16 {vr(XA+4*i,2)}, v{vRd} offset:{i*1024}")
        a(f"ds_read_b64_tr_b16 {vr(XA+4*i+2,2)}, v{vRd} offset:{i*1024+512}")
    exw = [Gim + 16 - 4 + r for r in range(4)]
    exw = [V() for _ in range(4)]
    nv = V.n
    for r in range(4):
        a(f"v_lshl_add_u32 v{vT2}, v{vG}, 2, {r}")
        a(f"v_xor_b32 v{vT3}, v{vN}, v{vT2}")
        a(f"v_lshlrev_b32 v{vT3}, 4, v{vT3}")
        a(f"v_lshl_add_u32 v{vT3}, v{vT2}, 8, v{vT3}")
        a(f"v_add_u32 v{exw[r]}, s34, v{vT3}")
    a("s_waitcnt lgkmcnt(0)")
    for i in range(4):
        a(f"v_mfma_f32_16x16x32_bf16 {vr(Dre+4*i,4)}, {vr(XA+4*i,4)}, {vr(Hc,4)}, 0")
        a(f"v_mfma_f32_16x16x32_bf16 {vr(Dim+4*i,4)}, {vr(XA+4*i,4)}, {vr(Hs,4)}, 0")
    for i in range(4):
        for r in range(4):
            x = XA + 4 * i + r
            a(f"v_mul_f32 v{x}, v{Dre+4*i+r}, v{tc+r}")
            a(f"v_fmac_f32 v{x}, v{Dim+4*i+r}, v{ts+r}")
            a(f"v_mul_f32 v{Dim+4*i+r}, v{Dim+4*i+r}, v{tc+r}")
            a(f"v_fma_f32 v{Dim+4*i+r}, -v{Dre+4*i+r}, v{ts+r}, v{Dim+4*i+r}")
        for r in range(4):
            a(f"v_cvt_pk_bf16_f32 v{PA+4*i+r}, v{XA+4*i+r}, v{Dim+4*i+r}")
        a(f"v_mfma_f32_16x16x32_bf16 {vr(Gre+4*i,4)}, {vr(PA+4*i,4)}, {vr(Fre,4)}, 0")
        a(f"v_mfma_f32_16x16x32_bf16 {vr(Gim+4*i,4)}, {vr(PA+4*i,4)}, {vr(Fim,4)}, 0")
    for i in range(4):
        for r in range(4):
            a(f"v_cvt_pk_bf16_f32 v{Dre+4*i+r}, v{Gre+4*i+r}, v{Gim+4*i+r}")
            a(f"ds_write_b32 v{exw[r]}, v{Dre+4*i+r} offset:{i*4}")
    a(f"""
    s_lshl_b32 s34, s{sW}, 2
    v_xor_b32 v{vT2}, s34, v{vN}
    v_lshlrev_b32 v{vT2}, 4, v{vT2}
    v_lshl_add_u32 v{vT2}, v{vN}, 8, v{vT2}
    v_lshl_add_u32 v{vT2}, v{vG}, 12, v{vT2}
    v_add_u32 v{vT2}, {A1B}, v{vT2}
    s_waitcnt lgkmcnt(0)
    s_barrier
    """)
    for u in range(4):
        if u == 0:
            a(f"ds_read_b128 {vr(XA,4)}, v{vT2}")
        else:
            a(f"v_xor_b32 v{vT3}, {u*16}, v{vT2}")
            a(f"ds_read_b128 {vr(XA+4*u,4)}, v{vT3}")
    for u in range(4):
        a(f"s_waitcnt lgkmcnt({3-u})")
        a(f"v_mfma_f32_16x16x32_bf16 {vr(Gre+4*u,4)}, {vr(XA+4*u,4)}, {vr(Fre,4)}, 0")
        a(f"v_mfma_f32_16x16x32_bf16 {vr(Gim+4*u,4)}, {vr(XA+4*u,4)}, {vr(Fim,4)}, 0")
    for u in range(4):
        a(f"v_cvt_pk_bf16_f32 v{ZR+4*u}, v{Gre+4*u}, v{Gre+4*u+1}")
        a(f"v_cvt_pk_bf16_f32 v{ZR+4*u+1}, v{Gre+4*u+2}, v{Gre+4*u+3}")
        a(f"v_cvt_pk_bf16_f32 v{ZR+4*u+2}, v{Gim+4*u}, v{Gim+4*u+1}")
        a(f"v_cvt_pk_bf16_f32 v{ZR+4*u+3}, v{Gim+4*u+2}, v{Gim+4*u+3}")

    def xbases():
        a(f"""
        s_add_u32 s34, s{sIT}, s{sROT}
        s_and_b32 s34, s34, 3
        s_mul_i32 s34, s34, 20480
        s_add_u32 s34, s34, {XB}
        """)
        for k in range(4):
            a(f"v_add_u32 v{vXa+k}, s34, v{vXl+k}")

    def xreads(buf, ks2):
        for T in range(5):
            a(f"ds_read_b128 {vr(xf[buf]+4*T,4)}, v{vXa+ks2} offset:{T*4096}")

    def wreads(buf, off, parts):
        for pi, vb in enumerate(parts):
            for q in range(2):
                a(f"ds_read_b64_tr_b16 {vr(wf[buf]+4*pi+2*q,2)}, v{vb} offset:{off + q*1024}")

    def mf1(buf):
        for T in range(5):
            if T > 0:
                a(f"v_mfma_f32_16x16x32_bf16 {vr(accq+4*(T-1),4)}, {vr(wf[buf],4)}, {vr(xf[buf]+4*T,4)}, {vr(accq+4*(T-1),4)}")
            a(f"v_mfma_f32_16x16x32_bf16 {vr(acck+4*T,4)}, {vr(wf[buf]+4,4)}, {vr(xf[buf]+4*T,4)}, {vr(acck+4*T,4)}")

    a(f"s_mov_b32 s{sIT}, 0")
    stamp(a, 2)
    a.label("K1_P1")
    xbases()
    for half in range(2):
        a("s_waitcnt vmcnt(8)")
        a("s_barrier")
        if half == 0:
            a(f"s_cmp_eq_u32 s{sIT}, 0")
            a(f"s_cbranch_scc1 K1_P1_SK")
        a("s_call_b64 s[54:55], K1_ISSUE")
        if half == 0:
            a.label("K1_P1_SK")
        wreads(0, half * 16384, [vWq, vWk])
        xreads(0, 2 * half)
        wreads(1, half * 16384 + 8192, [vWq, vWk])
        a("s_waitcnt lgkmcnt(4)")
        xreads(1, 2 * half + 1)
        mf1(0)
        a("s_waitcnt lgkmcnt(0)")
        mf1(1)
    a(f"""
    v_xor_b32 v{vWq}, 0x8000, v{vWq}
    v_xor_b32 v{vWk}, 0x8000, v{vWk}
    s_add_u32 s{sIT}, s{sIT}, 1
    s_cmp_lt_u32 s{sIT}, 4
    s_cbranch_scc1 K1_P1
    s_barrier
    s_call_b64 s[54:55], K1_ISSUE
    """)
    stamp(a, 3)
    a(f"""
    v_lshlrev_b32 v{vT0}, 18, v{vN}
    v_lshl_add_u32 v{vT0}, v{vG}, 4, v{vT0}
    s_lshl_b32 s34, s{sS2}, 1
    s_add_u32 s34, s34, s{sH}
    s_lshl_b32 s34, s34, 10
    s_lshl_b32 s35, s{sW}, 8
    s_add_u32 s34, s34, s35
    s_add_u32 s34, s34, {ZOFF}
    """)
    for u in range(4):
        a(f"buffer_store_dwordx4 {vr(ZR+4*u,4)}, v{vT0}, s[20:23], s34 offen offset:{u*64}")
    qf = tmp; kf = tmp + 8; Sc = tmp + 20; Sp = tmp + 36; c0 = tmp + 52; c1 = tmp + 56; mx = tmp + 60; t2 = tmp + 64; sm = tmp + 68
    for rt in range(4):
        a(f"v_cvt_pk_bf16_f32 v{qf+2*rt}, v{accq+4*rt}, v{accq+4*rt+1}")
        a(f"v_cvt_pk_bf16_f32 v{qf+2*rt+1}, v{accq+4*rt+2}, v{accq+4*rt+3}")
    for T in range(5):
        a(f"v_cvt_pk_bf16_f32 v{kf+2*T}, v{acck+4*T}, v{acck+4*T+1}")
        a(f"v_cvt_pk_bf16_f32 v{kf+2*T+1}, v{acck+4*T+2}, v{acck+4*T+3}")
    for rt in range(4):
        a(f"v_mfma_f32_16x16x16_bf16 {vr(Sp+4*rt,4)}, {vr(kf+2*rt,2)}, {vr(qf+2*rt,2)}, 0")
        a(f"v_mfma_f32_16x16x16_bf16 {vr(Sc+4*rt,4)}, {vr(kf+2*rt+2,2)}, {vr(qf+2*rt,2)}, 0")
    a(f"s_cmp_lg_u32 s{sRB}, 0")
    a(f"s_cbranch_scc1 K1_NOMASK")
    for r in range(4):
        a(f"v_mov_b32 v{Sp+r}, 0xff800000")
    a.label("K1_NOMASK")
    for rt in range(4):
        for r in range(4):
            a(f"v_cndmask_b32 v{Sc+4*rt+r}, v{Sp+4*rt+r}, v{Sc+4*rt+r}, s[{44+2*r}:{45+2*r}]")
    for rt in range(4):
        a(f"v_cndmask_b32 v{c0+rt}, v{Sc+4*rt}, v{Sc+4*rt+1}, s[52:53]")
        a(f"v_cndmask_b32 v{c1+rt}, v{Sc+4*rt+2}, v{Sc+4*rt+3}, s[52:53]")
    for rt in range(4):
        a(f"v_cvt_pk_bf16_f32 v{t2+rt}, v{c0+rt}, v{c1+rt}")
    for rt in range(4):
        a(f"v_lshlrev_b32 v{c0+rt}, 16, v{t2+rt}")
        a(f"v_and_b32 v{c1+rt}, 0xffff0000, v{t2+rt}")
    for rt in range(4):
        a(f"v_max_f32 v{mx+rt}, v{c0+rt}, v{c1+rt}")

    def allreduce(reg, op):
        for sw in ("v_permlane32_swap_b32", "v_permlane16_swap_b32"):
            for rt in range(4):
                a(f"v_mov_b32 v{t2+rt}, v{reg+rt}")
            for rt in range(4):
                a(f"{sw} v{reg+rt}, v{t2+rt}")
            for rt in range(4):
                a(f"{op} v{reg+rt}, v{reg+rt}, v{t2+rt}")
    allreduce(mx, "v_max_f32")
    KS = 0.25 * math.log2(math.e)
    a(f"s_mov_b32 s34, {f32(KS)}")
    for rt in range(4):
        a(f"v_sub_f32 v{c0+rt}, v{c0+rt}, v{mx+rt}")
        a(f"v_sub_f32 v{c1+rt}, v{c1+rt}, v{mx+rt}")
    for rt in range(4):
        a(f"v_mul_f32 v{c0+rt}, s34, v{c0+rt}")
        a(f"v_mul_f32 v{c1+rt}, s34, v{c1+rt}")
    for rt in range(4):
        a(f"v_exp_f32 v{c0+rt}, v{c0+rt}")
        a(f"v_exp_f32 v{c1+rt}, v{c1+rt}")
    for rt in range(4):
        a(f"v_add_f32 v{sm+rt}, v{c0+rt}, v{c1+rt}")
    allreduce(sm, "v_add_f32")
    for rt in range(4):
        a(f"v_rcp_f32 v{sm+rt}, v{sm+rt}")
    for rt in range(4):
        a(f"v_mul_f32 v{c0+rt}, v{c0+rt}, v{sm+rt}")
        a(f"v_mul_f32 v{c1+rt}, v{c1+rt}, v{sm+rt}")
    for rt in range(4):
        a(f"v_cvt_pk_bf16_f32 v{c0+rt}, v{c0+rt}, v{c0+rt}")
        a(f"v_cvt_pk_bf16_f32 v{c1+rt}, v{c1+rt}, v{c1+rt}")
    for rt in range(4):
        a(f"v_and_b32 v{Preg+4*rt}, v{c0+rt}, v{mprev}")
        a(f"v_and_b32 v{Preg+4*rt+1}, v{c1+rt}, v{mprev+1}")
        a(f"v_and_b32 v{Preg+4*rt+2}, v{c0+rt}, v{mcur}")
        a(f"v_and_b32 v{Preg+4*rt+3}, v{c1+rt}, v{mcur+1}")
    a(f"""
    s_mov_b32 s{sIT}, 0
    s_waitcnt vmcnt(4)
    s_barrier
    """)

    def mf2(buf):
        for T in range(5):
            a(f"v_mfma_f32_16x16x32_bf16 {vr(accv+4*T,4)}, {vr(xf[buf]+4*T,4)}, {vr(wf[buf],4)}, {vr(accv+4*T,4)}")

    stamp(a, 4)
    a.label("K1_P2")
    xbases()
    def rd2(buf, ks4):
        wreads(buf, (ks4 & 1) * 8192, [vWq if ks4 < 2 else vWk])
        xreads(buf, ks4)
    rd2(0, 0)
    rd2(1, 1)
    a("s_waitcnt lgkmcnt(7)")
    mf2(0)
    rd2(0, 2)
    a("s_waitcnt lgkmcnt(7)")
    mf2(1)
    rd2(1, 3)
    a("s_waitcnt lgkmcnt(7)")
    mf2(0)
    a("s_waitcnt lgkmcnt(0)")
    mf2(1)
    a(f"""
    v_add_u32 v{vWq}, 0x4000, v{vWq}
    v_add_u32 v{vWk}, 0x4000, v{vWk}
    s_add_u32 s{sIT}, s{sIT}, 1
    s_cmp_lt_u32 s{sIT}, 4
    s_cbranch_scc1 K1_P2
    """)
    stamp(a, 5)
    VF = tmp; Oa = tmp + 12; Op = tmp + 28
    for T in range(5):
        a(f"v_cvt_pk_bf16_f32 v{VF+2*T}, v{accv+4*T}, v{accv+4*T+1}")
        a(f"v_cvt_pk_bf16_f32 v{VF+2*T+1}, v{accv+4*T+2}, v{accv+4*T+3}")
    for rt in range(4):
        a(f"v_mfma_f32_16x16x32_bf16 {vr(Oa+4*rt,4)}, {vr(VF+2*rt,4)}, {vr(Preg+4*rt,4)}, 0")
    a(f"""
    v_and_b32 v{vT0}, 1, v{vG}
    v_lshlrev_b32 v{vT0}, 14, v{vT0}
    v_lshrrev_b32 v{vT1}, 1, v{vG}
    v_lshl_add_u32 v{vT0}, v{vT1}, 8, v{vT0}
    v_lshl_add_u32 v{vT0}, v{vN}, 4, v{vT0}
    s_lshl_b32 s34, s{sRB}, 16
    s_lshl_b32 s35, s{sHQ}, 2
    s_add_u32 s35, s35, s{sW}
    s_lshl_b32 s35, s35, 9
    s_add_u32 s34, s34, s35
    s_add_u32 s35, s34, 32768
    """)
    for rt in range(4):
        a(f"v_cvt_pk_bf16_f32 v{Op+2*rt}, v{Oa+4*rt}, v{Oa+4*rt+1}")
        a(f"v_cvt_pk_bf16_f32 v{Op+2*rt+1}, v{Oa+4*rt+2}, v{Oa+4*rt+3}")
    for pr in range(2):
        a(f"v_permlane16_swap_b32 v{Op+4*pr}, v{Op+4*pr+2}")
        a(f"v_permlane16_swap_b32 v{Op+4*pr+1}, v{Op+4*pr+3}")
    a(f"buffer_store_dwordx4 {vr(Op,4)}, v{vT0}, s[20:23], s34 offen")
    a(f"buffer_store_dwordx4 {vr(Op+4,4)}, v{vT0}, s[20:23], s35 offen")
    prof_end(a, 6, sW)
    a.label("K1_END")
    a("s_endpgm")
    a.label("K1_ISSUE")
    a(f"""
    s_lshr_b32 s30, s{sM}, 1
    s_add_u32 s30, s30, s{sROT}
    s_and_b32 s30, s30, 3
    s_lshl_b32 s30, s30, 1
    s_and_b32 s31, s{sM}, 1
    s_add_u32 s30, s30, s31
    s_mul_i32 s30, s30, 196608
    s_add_u32 s31, s{sM}, s{sROT}
    s_and_b32 s31, s31, 3
    s_mul_i32 s31, s31, 393216
    s_add_u32 s31, s31, 2048
    s_cmp_lt_u32 s{sM}, 8
    s_cselect_b32 s30, s30, s31
    s_cselect_b64 s[56:57], -1, 0
    s_add_u32 s30, s30, s{sHQ128}
    s_and_b32 s31, s{sM}, 3
    s_lshl_b32 s31, s31, 14
    s_add_u32 m0, s31, s{sWm0}
    v_cndmask_b32 v{vWcur}, v{vWvoff}, v{vWoff}, s[56:57]
    s_add_u32 s{sM}, s{sM}, 1
    """)
    for j in range(4):
        a(f"buffer_load_dwordx4 v{vWcur}, s[16:19], s30 offen lds")
        if j < 3:
            a("s_add_u32 m0, m0, 4096")
            a("s_add_u32 s30, s30, 49152")
    a("s_setpc_b64 s[54:55]")
    a.pad()
    return a.text(), nv


OB2 = 65536
ZB2 = 131072


def k2():
    a = Asm()
    V = VA(0)
    vL = V(); vN = V(); vG = V(); vT0 = V(); vT1 = V(); vT2 = V(); vT3 = V()
    vOff = V(); vWoOff = V(); vZoff = V(); vOrd = V()
    vWa = V(8); vZa = V(8)
    BM = V(32)
    acc = V(16); acc2 = V(16)
    of = [V(4), V(4)]; af = [V(16), V(16)]
    tmp = V(32)
    nv = V.n
    sW, sRB, sCB, sT1, sTH, sA = 24, 25, 26, 27, 28, 29
    sIT = 41
    a(f"""
    s_cmp_ge_u32 s2, 256
    s_cbranch_scc1 K2_END
    """)
    stamp(a, 0)
    a(f"""
    s_load_dwordx2 s[8:9], s[0:1], 56
    s_load_dwordx2 s[12:13], s[0:1], 64
    s_load_dwordx2 s[20:21], s[0:1], 80
    v_lshrrev_b32 v{vT0}, 6, v0
    v_and_b32 v{vL}, 63, v0
    v_readfirstlane_b32 s{sW}, v{vT0}
    s_mov_b32 s10, 0x80000
    s_mov_b32 s11, 0x20000
    s_mov_b32 s14, 0x400000
    s_mov_b32 s15, 0x20000
    s_mov_b32 s22, {WS_BYTES}
    s_mov_b32 s23, 0x20000
    s_and_b32 s30, s2, 7
    s_lshr_b32 s31, s2, 3
    s_lshr_b32 s32, s30, 1
    s_lshl_b32 s32, s32, 3
    s_lshr_b32 s33, s31, 2
    s_add_u32 s{sRB}, s32, s33
    s_and_b32 s32, s30, 1
    s_lshl_b32 s32, s32, 2
    s_and_b32 s33, s31, 3
    s_add_u32 s{sCB}, s32, s33
    s_lshl_b32 s32, s30, 5
    s_add_u32 s32, s32, s31
    s_and_b32 s{sTH}, s32, 1
    s_bfe_u32 s{sA}, s32, 0x30001
    s_lshr_b32 s{sT1}, s32, 4
    v_and_b32 v{vN}, 15, v{vL}
    v_lshrrev_b32 v{vG}, 4, v{vL}
    v_lshlrev_b32 v{vOff}, 4, v{vL}
    """)
    a(f"""
    s_lshl_b32 s34, s{sW}, 2
    v_add_u32 v{vT0}, s34, v{vG}
    s_lshr_b32 s34, s{sW}, 1
    s_lshl_b32 s34, s34, 3
    v_lshl_add_u32 v{vT1}, v{vG}, 1, s34
    v_xor_b32 v{vT1}, v{vN}, v{vT1}
    v_and_b32 v{vT2}, 7, v{vT1}
    v_lshlrev_b32 v{vT2}, 4, v{vT2}
    v_lshl_add_u32 v{vT2}, v{vT0}, 10, v{vT2}
    v_lshrrev_b32 v{vT1}, 3, v{vT1}
    v_lshl_add_u32 v{vWoOff}, v{vT1}, 18, v{vT2}
    s_lshl_b32 s35, s{sCB}, 7
    s_lshl_b32 m0, s{sW}, 10
    s_waitcnt lgkmcnt(0)
    """)
    for j in range(16):
        a(f"buffer_load_dwordx4 v{vWoOff}, s[8:11], s35 offen lds")
        if j < 15:
            a("s_add_u32 m0, m0, 4096")
            a("s_add_u32 s35, s35, 16384")
    a(f"""
    s_lshl_b32 s35, s{sRB}, 2
    s_add_u32 s35, s35, s{sW}
    s_lshl_b32 s35, s35, 14
    s_lshl_b32 s34, s{sW}, 14
    s_add_u32 m0, s34, {OB2}
    """)
    for j in range(16):
        if j % 4 == 0 and j > 0:
            a("s_add_u32 m0, m0, 4096")
            a("s_add_u32 s35, s35, 4096")
        a(f"buffer_load_dwordx4 v{vOff}, s[20:23], s35 offen offset:{(j%4)*1024} lds")
    a(f"""
    v_lshlrev_b32 v{vT0}, 2, v{vG}
    v_xor_b32 v{vT0}, v{vN}, v{vT0}
    v_and_b32 v{vT1}, 7, v{vT0}
    v_lshlrev_b32 v{vT1}, 4, v{vT1}
    v_lshrrev_b32 v{vT0}, 3, v{vT0}
    v_lshl_add_u32 v{vT1}, v{vT0}, 10, v{vT1}
    v_lshl_add_u32 v{vZoff}, v{vG}, 11, v{vT1}
    s_lshl_b32 s35, s{sT1}, 18
    s_lshl_b32 s34, s{sW}, 16
    s_add_u32 s35, s35, s34
    s_lshl_b32 s34, s{sA}, 7
    s_add_u32 s35, s35, s34
    s_add_u32 s35, s35, {ZOFF}
    s_lshl_b32 s34, s{sW}, 13
    s_add_u32 m0, s34, {ZB2}
    """)
    for j in range(8):
        a(f"buffer_load_dwordx4 v{vZoff}, s[20:23], s35 offen lds")
        if j < 7:
            a("s_add_u32 m0, m0, 1024")
            a("s_add_u32 s35, s35, 8192")
    tf = vT0; d16 = vT1; phi = vT2
    a1 = tmp; a2 = tmp + 4; cs = tmp + 8; sn = tmp + 12
    a(f"""
    s_lshl_b32 s34, s{sTH}, 6
    s_lshl_b32 s35, s{sW}, 4
    s_add_u32 s34, s34, s35
    v_add_u32 v{tf}, s34, v{vN}
    v_lshlrev_b32 v{tf}, 4, v{tf}
    v_add_u32 v{vOrd}, s{sT1}, v{tf}
    v_cvt_f32_u32 v{tf}, v{vOrd}
    v_mul_f32 v{tf}, {f32(1/2048)}, v{tf}
    v_mul_f32 v{d16}, {f32(16.0)}, v{tf}
    v_and_b32 v{phi}, 1, v{vG}
    v_cvt_f32_u32 v{phi}, v{phi}
    v_mul_f32 v{phi}, {f32(0.25)}, v{phi}
    v_lshlrev_b32 v{vT3}, 2, v{vG}
    v_cvt_f32_u32 v{vT3}, v{vT3}
    v_mul_f32 v{vT3}, v{vT3}, v{tf}
    """)
    for jj in range(4):
        if jj == 0:
            a(f"v_mov_b32 v{cs}, v{vT3}")
        else:
            a(f"v_fmamk_f32 v{cs+jj}, v{tf}, {f32(float(jj))}, v{vT3}")
    for jj in range(4):
        a(f"v_sub_f32 v{a1+jj}, v{cs+jj}, v{phi}")
        a(f"v_add_f32 v{a2+jj}, v{cs+jj}, v{phi}")
    for kap in range(8):
        for jj in range(4):
            a(f"v_cos_f32 v{cs+jj}, v{a1+jj}")
            a(f"v_sin_f32 v{sn+jj}, v{a2+jj}")
        if kap < 7:
            for jj in range(4):
                a(f"v_add_f32 v{a1+jj}, v{a1+jj}, v{d16}")
                a(f"v_add_f32 v{a2+jj}, v{a2+jj}, v{d16}")
        a(f"v_cvt_pk_bf16_f32 v{BM+4*kap}, v{cs}, v{cs+1}")
        a(f"v_cvt_pk_bf16_f32 v{BM+4*kap+1}, v{cs+2}, v{cs+3}")
        a(f"v_cvt_pk_bf16_f32 v{BM+4*kap+2}, v{sn}, v{sn+1}")
        a(f"v_cvt_pk_bf16_f32 v{BM+4*kap+3}, v{sn+2}, v{sn+3}")
    a(f"""
    v_bfe_u32 v{vT0}, v{vL}, 2, 2
    v_and_b32 v{vT1}, 3, v{vL}
    v_lshl_add_u32 v{vT2}, v{vG}, 3, v{vT0}
    v_lshlrev_b32 v{vT2}, 8, v{vT2}
    v_lshrrev_b32 v{vT3}, 1, v{vT1}
    v_lshlrev_b32 v{tmp}, 1, v{vT0}
    v_xor_b32 v{vT3}, v{vT3}, v{tmp}
    v_and_b32 v{tmp}, 1, v{vG}
    v_lshlrev_b32 v{tmp+1}, 3, v{tmp}
    v_xor_b32 v{vT3}, v{vT3}, v{tmp+1}
    v_lshl_add_u32 v{vT2}, v{vT3}, 4, v{vT2}
    v_and_b32 v{vT3}, 1, v{vT1}
    v_lshl_add_u32 v{vWa}, v{vT3}, 3, v{vT2}
    """)
    for i in range(1, 8):
        a(f"v_xor_b32 v{vWa+i}, {(i&3)*32 + (i>>2)*128}, v{vWa}")
    a(f"""
    v_lshl_add_u32 v{vT2}, v{vG}, 2, v{vT0}
    v_lshlrev_b32 v{vT2}, 8, v{vT2}
    v_lshlrev_b32 v{vT3}, 2, v{vT0}
    v_xor_b32 v{vT3}, v{vT3}, v{vT1}
    v_lshl_add_u32 v{vT2}, v{vT3}, 4, v{vT2}
    v_add_u32 v{vT2}, v{vT2}, v{tmp+1}
    v_add_u32 v{vZa}, {ZB2}, v{vT2}
    """)
    for i in range(1, 8):
        tau, q = i >> 1, i & 1
        a(f"v_xor_b32 v{vZa+i}, {128*(tau&1) + 64*(tau>>1) + 8*q}, v{vZa}")
    a(f"""
    s_lshl_b32 s34, s{sW}, 14
    s_add_u32 s34, s34, {OB2}
    v_add_u32 v{vOff}, s34, v{vOff}
    """)
    for i in range(32):
        a(f"v_mov_b32 v{acc+i}, 0")
    a(f"""
    s_mov_b32 s{sIT}, 0
    """)
    stamp(a, 1)
    a(f"""
    s_waitcnt vmcnt(0)
    s_barrier
    """)
    stamp(a, 2)
    def zreads(buf, kap):
        for tau in range(4):
            for q in range(2):
                a(f"ds_read_b64_tr_b16 {vr(af[buf]+4*tau+2*q,2)}, v{vZa+2*tau+q} offset:{kap*4096}")
    zreads(0, 0)
    for kap in range(8):
        if kap < 7:
            zreads((kap + 1) & 1, kap + 1)
            a("s_waitcnt lgkmcnt(8)")
        else:
            a("s_waitcnt lgkmcnt(0)")
        for tau in range(4):
            a(f"v_mfma_f32_16x16x32_bf16 {vr(acc2+4*tau,4)}, {vr(af[kap&1]+4*tau,4)}, {vr(BM+4*kap,4)}, {vr(acc2+4*tau,4)}")

    def epilogue(ac, voff, soff, pk):
        for tau in range(4):
            a(f"v_cvt_pk_bf16_f32 v{pk+2*tau}, v{ac+4*tau}, v{ac+4*tau+1}")
            a(f"v_cvt_pk_bf16_f32 v{pk+2*tau+1}, v{ac+4*tau+2}, v{ac+4*tau+3}")
        for pr in range(2):
            a(f"v_permlane16_swap_b32 v{pk+4*pr}, v{pk+4*pr+2}")
            a(f"v_permlane16_swap_b32 v{pk+4*pr+1}, v{pk+4*pr+3}")
        a(f"buffer_store_dwordx4 {vr(pk,4)}, v{voff}, s[12:15], {soff} offen")
        a(f"buffer_store_dwordx4 {vr(pk+4,4)}, v{voff}, s[12:15], {soff} offen offset:64")
    a(f"""
    v_and_b32 v{vT0}, 1, v{vG}
    v_lshlrev_b32 v{vT0}, 5, v{vT0}
    v_lshrrev_b32 v{vT1}, 1, v{vG}
    v_lshl_add_u32 v{vT0}, v{vT1}, 4, v{vT0}
    v_lshl_add_u32 v{vT1}, v{vOrd}, 11, v{vT0}
    s_lshl_b32 s34, s{sA}, 7
    """)
    epilogue(acc2, vT1, "s34", tmp)
    stamp(a, 3)
    a.label("K2_B2")
    for part in range(2):
        a(f"ds_read_b128 {vr(of[part],4)}, v{vOff} offset:{part*8192}")
    for part in range(2):
        for tau in range(4):
            for q in range(2):
                if part == 1 and tau >= 2:
                    continue
                a(f"ds_read_b64_tr_b16 {vr(af[part]+4*tau+2*q,2)}, v{vWa+4*part+tau} offset:{q*1024}")
    a("s_waitcnt lgkmcnt(4)")
    for tau in range(2, 4):
        for q in range(2):
            a(f"ds_read_b64_tr_b16 {vr(af[1]+4*tau+2*q,2)}, v{vWa+4+tau} offset:{q*1024}")
    for tau in range(4):
        a(f"v_mfma_f32_16x16x32_bf16 {vr(acc+4*tau,4)}, {vr(af[0]+4*tau,4)}, {vr(of[0],4)}, {vr(acc+4*tau,4)}")
    for i in range(8):
        a(f"v_add_u32 v{vWa+i}, 0x2000, v{vWa+i}")
    a(f"v_add_u32 v{vOff}, 0x400, v{vOff}")
    a("s_waitcnt lgkmcnt(0)")
    for tau in range(4):
        a(f"v_mfma_f32_16x16x32_bf16 {vr(acc+4*tau,4)}, {vr(af[1]+4*tau,4)}, {vr(of[1],4)}, {vr(acc+4*tau,4)}")
    a(f"""
    s_add_u32 s{sIT}, s{sIT}, 1
    s_cmp_lt_u32 s{sIT}, 8
    s_cbranch_scc1 K2_B2
    v_lshl_add_u32 v{vT1}, v{vN}, 11, v{vT0}
    s_lshl_b32 s34, s{sRB}, 2
    s_add_u32 s34, s34, s{sW}
    s_lshl_b32 s34, s34, 15
    s_lshl_b32 s35, s{sCB}, 7
    s_add_u32 s34, s34, s35
    s_add_u32 s34, s34, 1024
    """)
    epilogue(acc, vT1, "s34", tmp + 8)
    prof_end(a, 4, sW)
    a.label("K2_END")
    a("s_endpgm")
    a.pad()
    return a.text(), nv


HEADER = """; Kernarg layout for this problem (88 bytes, ptrs only, base s[0:1]):
"""


def kd(name, nv, ns=96):
    nv4 = (nv + 3) // 4 * 4
    return f""".amdhsa_kernel {name}
  .amdhsa_next_free_vgpr {nv4}
  .amdhsa_next_free_sgpr {ns}
  .amdhsa_accum_offset {nv4}
  .amdhsa_group_segment_fixed_size 0
  .amdhsa_kernarg_size 88
  .amdhsa_user_sgpr_count 2
  .amdhsa_user_sgpr_kernarg_segment_ptr 1
  .amdhsa_system_sgpr_workgroup_id_x 1
.end_amdhsa_kernel
"""


def main(out):
    t1, n1 = k1()
    t2, n2 = k2()
    s = HEADER
    s += "; @launch kernel=fn_stage1_kernel grid=(256,1,1) block=(256,1,1) lds=163840\n"
    s += "; @launch kernel=fn_stage2_kernel grid=(256,1,1) block=(256,1,1) lds=163840\n"
    for i in range(EXTRA):
        s += "; @launch kernel=fn_empty_kernel grid=(256,1,1) block=(256,1,1) lds=0\n"
    s += '.amdgcn_target "amdgcn-amd-amdhsa--gfx950"\n.text\n'
    if EXTRA:
        s += ".globl fn_empty_kernel\n.p2align 8\n.type fn_empty_kernel,@function\nfn_empty_kernel:\n  s_endpgm\n"
    for nm, t in (("fn_stage1_kernel", t1), ("fn_stage2_kernel", t2)):
        s += f".globl {nm}\n.p2align 8\n.type {nm},@function\n{nm}:\n{t}"
    s += '.section .rodata,"a"\n.p2align 6\n' + kd("fn_stage1_kernel", n1) + ".p2align 6\n" + kd("fn_stage2_kernel", n2)
    if EXTRA:
        s += ".p2align 6\n" + kd("fn_empty_kernel", 4)
    open(out, "w").write(s)
    print("vgprs", n1, n2)


if __name__ == "__main__":
    main(sys.argv[1] if len(sys.argv) > 1 else f"cdna_kernels/{NAME}.s")
```
